```python
import torch

def _softmax(x, axis=-1):
    return torch.softmax(x, dim=axis)
def _gelu(x):
    return torch.nn.functional.gelu(x, approximate="tanh")
def _silu(x):
    return torch.nn.functional.silu(x)
def _sigmoid(x):
    return torch.sigmoid(x)
def _layernorm(x, axis=-1, eps=1e-5):
    m = x.mean(dim=axis, keepdim=True)
    v = x.var(dim=axis, keepdim=True, unbiased=False)
    return (x - m) / torch.sqrt(v + eps)
def _scatter_add(tgt, idx, src, axis=0):
    return tgt.clone().index_add_(axis, idx, src)
def _segment_sum(src, seg, n):
    out = torch.zeros((n,) + src.shape[1:], dtype=src.dtype)
    return out.index_add_(0, seg, src)
def _pad(x, pw):
    flat = tuple(v for pair in reversed(pw) for v in pair)
    return torch.nn.functional.pad(x, flat)

kernel_name = 'gated_mix__gqa_block_cached__moe_arch_mod__decode'

def setup_inputs():

    _w = (lambda a: (lambda t: t.to(torch.bfloat16) if t.is_floating_point() else t)(torch.as_tensor(a)))
    def _A_setup():
        B, Sq, D = 1, 1, 1024
        Hq, Hkv, Sk, Dh = 32, 4, 65536, 128
        assert Hq % Hkv == 0, (Hq, Hkv)
        return {
            "x": _w((lambda *s: torch.randn(*s, dtype=torch.bfloat16) * 0.05)(B, Sq, D)),
            "k_cache": _w((lambda *s: torch.randn(*s, dtype=torch.bfloat16) * 3.2)(B, Hkv, Sk, Dh)),
            "v_cache": _w((lambda *s: torch.randn(*s, dtype=torch.bfloat16) * 1.6)(B, Hkv, Sk, Dh)),
            "wq": _w((lambda *s: torch.randn(*s, dtype=torch.bfloat16) * 3.2)(D, Hq * Dh) * (D ** -0.5)),
            "wo": _w((lambda *s: torch.randn(*s, dtype=torch.bfloat16) * 1.6)(Hq * Dh, D) * ((Hq * Dh) ** -0.5)),
        }
    _A_in = _A_setup()

    def _B_setup():
        B, S, D, F, C = 1, 1, 1024, 3584, 1
        return {
            "x": _w((lambda *s: torch.randn(*s, dtype=torch.bfloat16) * 0.05)(B, S, D)),
            "w_r": _w((lambda *s: torch.randn(*s, dtype=torch.bfloat16) * 0.05)(D)),
            "w_gate": _w((lambda *s: torch.randn(*s, dtype=torch.bfloat16) * 0.05)(D, F)),
            "w_up": _w((lambda *s: torch.randn(*s, dtype=torch.bfloat16) * 0.05)(D, F)),
            "w_down": _w((lambda *s: torch.randn(*s, dtype=torch.bfloat16) * 0.05)(F, D)),
        }
    _B_in = _B_setup()

    return {
        "A_x": _A_in["x"],
        "A_k_cache": _A_in["k_cache"],
        "A_v_cache": _A_in["v_cache"],
        "A_wq": _A_in["wq"],
        "A_wo": _A_in["wo"],
        "B_x": _B_in["x"],
        "B_w_r": _B_in["w_r"],
        "B_w_gate": _B_in["w_gate"],
        "B_w_up": _B_in["w_up"],
        "B_w_down": _B_in["w_down"],
        "gate_w": _w((lambda *s: torch.randn(*s, dtype=torch.bfloat16) * 0.05)(1024) * 16.0),
    }

def reference(A_x, A_k_cache, A_v_cache, A_wq, A_wo, B_x, B_w_r, B_w_gate, B_w_up, B_w_down, gate_w):
    def _A_ref(x, k_cache, v_cache, wq, wo):
        B, Sq, D = x.shape
        Hq, Dh = 32, 128
        Hkv = k_cache.shape[1]
        rep = Hq // Hkv
        q = (lambda x, *d: x.permute(*d))((x @ wq).reshape(B, Sq, Hq, Dh), 0, 2, 1, 3)
        k = (lambda x, n, axis: torch.repeat_interleave(x, n, dim=axis))(k_cache, rep, axis=1)
        v = (lambda x, n, axis: torch.repeat_interleave(x, n, dim=axis))(v_cache, rep, axis=1)
        scores = torch.einsum("bhqd,bhkd->bhqk", q, k) * (Dh ** -0.5)
        p = _softmax(scores, axis=-1)
        o = torch.einsum("bhqk,bhkd->bhqd", p, v)
        return (lambda x, *d: x.permute(*d))(o, 0, 2, 1, 3).reshape(B, Sq, Hq * Dh) @ wo

    def _B_ref(x, w_r, w_gate, w_up, w_down):
        B, S, D = x.shape
        C = 1
        r = x @ w_r
        idx = torch.argsort(-r, axis=-1)[:, :C]
        idx_e = (lambda x, n, axis: torch.repeat_interleave(x, n, dim=axis))(idx.reshape(B, C, 1), D, axis=2)
        x_sel = (lambda x, i, axis: torch.take_along_dim(x, i, dim=axis))(x, idx_e, axis=1)
        g = _silu(x_sel @ w_gate)
        u = x_sel @ w_up
        y = (g * u) @ w_down
        r_sel = _sigmoid((lambda x, i, axis: torch.take_along_dim(x, i, dim=axis))(r, idx, axis=1))
        y = y * r_sel.reshape(B, C, 1)
        b_off = (torch.arange(B) * S).reshape(B, 1)
        flat_idx = (idx + b_off).reshape(B * C)
        zero = (x * 0.0).reshape(B * S, D)
        upd = _scatter_add(zero, flat_idx, y.reshape(B * C, D), axis=0)
        return x + upd.reshape(B, S, D)

    x = A_x
    g = _sigmoid((x * gate_w).sum(-1, keepdims=True))
    a = _A_ref(x, A_k_cache, A_v_cache, A_wq, A_wo)
    b = _B_ref(x, B_w_r, B_w_gate, B_w_up, B_w_down)
    return g * a + (1 - g) * b
```

```python
import sys, struct

NAME = "gated_mix__gqa_block_cached__moe_arch_mod__decode"

def f32(x):
    return "0x%08x" % struct.unpack("<I", struct.pack("<f", x))[0]

QP = 0x000000
GP = 0x010000
UP = 0x020000
SC = 0x030000
AO = 0x100000
AML = 0x200000
OP = 0x300000
WS_SIZE = 268435456

LOG2E = 1.4426950408889634
CSC = LOG2E * (128 ** -0.5)

class A:
    def __init__(self):
        self.l = []
    def __call__(self, s):
        for line in s.strip("\n").split("\n"):
            self.l.append("    " + line.strip())
    def label(self, s):
        self.l.append(s + ":")
    def raw(self, s):
        self.l.append(s)
    def text(self):
        return "\n".join(self.l) + "\n"

def srd(a, sb, size):
    a(f"""
    s_and_b32 s{sb+1}, s{sb+1}, 0xffff
    s_mov_b32 s{sb+2}, {size}
    s_mov_b32 s{sb+3}, 0x00020000
    """)

def wave_allreduce(a, v, t, op):
    for r in (8, 4, 2, 1):
        a(f"s_nop 1")
        a(f"{op}_dpp v{v}, v{v}, v{v} row_ror:{r} row_mask:0xf bank_mask:0xf")
    a(f"""
    v_mov_b32 v{t}, v{v}
    s_nop 1
    v_permlane16_swap_b32 v{v}, v{t}
    {op} v{v}, v{v}, v{t}
    v_mov_b32 v{t}, v{v}
    s_nop 1
    v_permlane32_swap_b32 v{v}, v{t}
    {op} v{v}, v{v}, v{t}
    """)

def reduce8(a, acc):
    a("s_nop 1")
    for b in (0, 2, 4, 6):
        a(f"v_permlane32_swap_b32 v{acc+b}, v{acc+b+1}")
    for b in (0, 2, 4, 6):
        a(f"v_add_f32 v{acc+b}, v{acc+b}, v{acc+b+1}")
    a("s_nop 1")
    a(f"v_permlane16_swap_b32 v{acc}, v{acc+2}")
    a(f"v_permlane16_swap_b32 v{acc+4}, v{acc+6}")
    a(f"v_add_f32 v{acc}, v{acc}, v{acc+2}")
    a(f"v_add_f32 v{acc+4}, v{acc+4}, v{acc+6}")

def gemv_rows(a, nrows, wbase, xp, acc, t0, t1, waitbase):
    for i in range(nrows):
        xr = xp + i // 2
        if i % 2 == 0:
            a(f"v_and_b32 v{t0}, 0xffff, v{xr}")
            a(f"v_lshlrev_b32 v{t1}, 16, v{xr}")
        else:
            a(f"v_lshrrev_b32 v{t0}, 16, v{xr}")
            a(f"v_and_b32 v{t1}, 0xffff0000, v{xr}")
        if waitbase is not None:
            a(f"s_waitcnt vmcnt({waitbase + nrows - 1 - i})")
        for d in range(4):
            a(f"v_dot2c_f32_bf16 v{acc+2*d}, v{wbase+4*i+d}, v{t0}")
            a(f"v_dot2c_f32_bf16 v{acc+2*d+1}, v{wbase+4*i+d}, v{t1}")

def kernel_head(a, name):
    a.raw(f".globl {name}")
    a.raw(".p2align 8")
    a.raw(f".type {name},@function")
    a.label(name)

def descriptor(name, vgpr, sgpr):
    acc = (vgpr + 3) // 4 * 4
    return f""".p2align 6
.amdhsa_kernel {name}
  .amdhsa_next_free_vgpr {vgpr}
  .amdhsa_next_free_sgpr {sgpr}
  .amdhsa_accum_offset {acc}
  .amdhsa_group_segment_fixed_size 0
  .amdhsa_kernarg_size 112
  .amdhsa_user_sgpr_count 2
  .amdhsa_user_sgpr_kernarg_segment_ptr 1
  .amdhsa_system_sgpr_workgroup_id_x 1
.end_amdhsa_kernel
"""

NT = " nt"

def k1(a):
    kernel_head(a, "gemv1_kernel")
    a("""
    s_cmp_ge_u32 s2, 353
    s_cbranch_scc1 K1_END
    s_load_dwordx2 s[4:5], s[0:1], 0
    s_load_dwordx2 s[8:9], s[0:1], 24
    s_load_dwordx2 s[20:21], s[0:1], 56
    s_load_dwordx2 s[22:23], s[0:1], 64
    s_load_dwordx2 s[12:13], s[0:1], 104
    s_load_dwordx2 s[24:25], s[0:1], 48
    s_load_dwordx2 s[28:29], s[0:1], 80
    v_and_b32 v1, 63, v0
    v_lshrrev_b32 v2, 6, v0
    v_lshrrev_b32 v3, 4, v1
    v_and_b32 v4, 15, v1
    s_waitcnt lgkmcnt(0)
    """)
    srd(a, 4, 2048)
    srd(a, 12, WS_SIZE)
    a("""
    s_cmp_eq_u32 s2, 352
    s_cbranch_scc1 K1_SCAL
    ; sp = wg div 88, cb = wg mod 88
    s_mov_b32 s16, 0
    s_mov_b32 s17, s2
    s_cmp_ge_u32 s17, 176
    s_cselect_b32 s18, 176, 0
    s_cselect_b32 s19, 2, 0
    s_sub_u32 s17, s17, s18
    s_add_u32 s16, s16, s19
    s_cmp_ge_u32 s17, 88
    s_cselect_b32 s18, 88, 0
    s_cselect_b32 s19, 1, 0
    s_sub_u32 s17, s17, s18
    s_add_u32 s16, s16, s19
    ; s16 = sp, s17 = cb
    ; defaults: wq
    s_mov_b32 s10, 0x800000
    s_mov_b32 s18, 8192        ; stride
    s_mov_b32 s19, 4096        ; ncols
    s_mov_b32 s26, %d          ; out base
    s_cmp_lt_u32 s17, 32
    s_cbranch_scc1 K1_SEL
    s_mov_b32 s10, 0x700000
    s_mov_b32 s18, 7168
    s_mov_b32 s19, 3584
    s_mov_b64 s[8:9], s[20:21]
    s_mov_b32 s26, %d
    s_sub_u32 s17, s17, 32
    s_cmp_lt_u32 s17, 28
    s_cbranch_scc1 K1_SEL
    s_mov_b64 s[8:9], s[22:23]
    s_mov_b32 s26, %d
    s_sub_u32 s17, s17, 28
    """ % (QP, GP, UP))
    a.label("K1_SEL")
    a("""
    s_and_b32 s9, s9, 0xffff
    s_mov_b32 s11, 0x00020000
    s_lshl_b32 s27, s16, 8
    v_lshlrev_b32 v5, 6, v2
    v_lshl_add_u32 v5, v3, 4, v5
    v_add_u32 v5, s27, v5          ; row0
    v_lshlrev_b32 v6, 1, v5
    buffer_load_dwordx4 v[8:11], v6, s[4:7], 0 offen
    buffer_load_dwordx4 v[12:15], v6, s[4:7], 0 offen offset:16
    v_mul_lo_u32 v7, v5, s18
    s_lshl_b32 s27, s17, 8
    v_lshl_add_u32 v7, v4, 4, v7
    v_add_u32 v7, s27, v7
    s_mov_b32 s27, 0
    """)
    for i in range(16):
        a(f"buffer_load_dwordx4 v[{32+4*i}:{35+4*i}], v7, s[8:11], s27 offen{NT}")
        if i < 15:
            a("s_add_u32 s27, s27, s18")
    for r in range(16, 24):
        a(f"v_mov_b32 v{r}, 0")
    a("s_waitcnt vmcnt(16)")
    gemv_rows(a, 16, 32, 8, 16, 24, 25, 0)
    reduce8(a, 16)
    a("""
    v_and_b32 v24, 1, v3
    v_lshlrev_b32 v24, 1, v24
    v_lshrrev_b32 v25, 1, v3
    v_or_b32 v24, v24, v25
    v_lshl_add_u32 v24, v4, 3, v24
    v_lshlrev_b32 v24, 2, v24
    v_lshl_add_u32 v24, v2, 9, v24
    ds_write2_b32 v24, v16, v20 offset0:0 offset1:4
    s_waitcnt lgkmcnt(0)
    s_barrier
    v_cmp_gt_u32 vcc, 128, v0
    s_and_saveexec_b64 s[30:31], vcc
    s_cbranch_execz K1_END
    v_lshlrev_b32 v24, 2, v0
    ds_read2st64_b32 v[16:17], v24 offset0:0 offset1:2
    ds_read2st64_b32 v[18:19], v24 offset0:4 offset1:6
    s_mul_i32 s27, s16, s19
    s_lshl_b32 s28, s17, 7
    s_add_u32 s27, s27, s28
    s_lshl_b32 s27, s27, 2
    s_add_u32 s27, s27, s26
    s_waitcnt lgkmcnt(0)
    v_add_f32 v16, v16, v17
    v_add_f32 v18, v18, v19
    v_add_f32 v16, v16, v18
    buffer_store_dword v16, v24, s[12:15], s27 offen
    s_endpgm
    """)
    a.label("K1_SCAL")
    srd(a, 24, 2048)
    srd(a, 28, 2048)
    a("""
    v_lshlrev_b32 v6, 3, v0
    buffer_load_dwordx2 v[8:9], v6, s[4:7], 0 offen      ; x
    buffer_load_dwordx2 v[10:11], v6, s[24:27], 0 offen  ; w_r
    buffer_load_dwordx2 v[12:13], v6, s[28:31], 0 offen  ; gate_w
    v_mov_b32 v16, 0
    v_mov_b32 v17, 0
    s_waitcnt vmcnt(0)
    v_dot2c_f32_bf16 v16, v8, v10
    v_dot2c_f32_bf16 v16, v9, v11
    """)
    for d in range(2):
        a(f"""
        v_lshlrev_b32 v18, 16, v{8+d}
        v_and_b32 v19, 0xffff0000, v{8+d}
        v_lshlrev_b32 v20, 16, v{12+d}
        v_and_b32 v21, 0xffff0000, v{12+d}
        v_mul_f32 v18, v18, v20
        v_mul_f32 v19, v19, v21
        v_cvt_pk_bf16_f32 v18, v18, v19
        v_lshlrev_b32 v19, 16, v18
        v_and_b32 v18, 0xffff0000, v18
        v_add_f32 v17, v17, v18
        v_add_f32 v17, v17, v19
        """)
    wave_allreduce(a, 16, 18, "v_add_f32")
    wave_allreduce(a, 17, 18, "v_add_f32")
    a("""
    v_lshlrev_b32 v18, 3, v2
    ds_write_b64 v18, v[16:17]
    s_waitcnt lgkmcnt(0)
    s_barrier
    v_mov_b32 v18, 0
    ds_read_b128 v[20:23], v18
    ds_read_b128 v[24:27], v18 offset:16
    s_waitcnt lgkmcnt(0)
    v_add_f32 v16, v20, v22
    v_add_f32 v17, v21, v23
    v_add_f32 v18, v24, v26
    v_add_f32 v19, v25, v27
    v_add_f32 v16, v16, v18     ; r
    v_add_f32 v17, v17, v19     ; gate sum
    v_cvt_pk_bf16_f32 v16, v16, v17
    v_and_b32 v17, 0xffff0000, v16
    v_lshlrev_b32 v16, 16, v16
    v_mul_f32 v16, %s, v16
    v_mul_f32 v17, %s, v17
    v_exp_f32 v16, v16
    v_exp_f32 v17, v17
    s_nop 0
    v_add_f32 v16, 1.0, v16
    v_add_f32 v17, 1.0, v17
    v_rcp_f32 v16, v16
    v_rcp_f32 v17, v17
    s_nop 0
    v_cvt_pk_bf16_f32 v16, v16, v17
    v_and_b32 v20, 0xffff0000, v16     ; g
    v_lshlrev_b32 v22, 16, v16         ; sr
    v_sub_f32 v21, 1.0, v20
    v_cvt_pk_bf16_f32 v21, v21, v21
    v_lshlrev_b32 v21, 16, v21         ; 1-g
    v_mov_b32 v23, 0
    v_cmp_eq_u32 vcc, 0, v0
    s_and_saveexec_b64 s[30:31], vcc
    s_cbranch_execz K1_END
    s_mov_b32 s27, %d
    buffer_store_dwordx4 v[20:23], off, s[12:15], s27
    """ % (f32(-LOG2E), f32(-LOG2E), SC))
    a.label("K1_END")
    a("s_endpgm")

def k2(a):
    kernel_head(a, "attn_kernel")
    KR, VR0, QR, SR = 128, 64, 48, 16
    VR1, OR_, TR, PR = 128, 192, 224, 240
    LQ, LM, LO = 0, 2048, 4096
    HS = 528
    WSZ = 8 * HS
    a("""
    s_cmp_ge_u32 s2, 256
    s_cbranch_scc1 K2_END
    s_load_dwordx2 s[4:5], s[0:1], 8
    s_load_dwordx2 s[8:9], s[0:1], 16
    s_load_dwordx2 s[12:13], s[0:1], 104
    v_and_b32 v1, 63, v0
    v_lshrrev_b32 v2, 6, v0
    v_lshrrev_b32 v3, 4, v1       ; g
    v_and_b32 v4, 15, v1          ; c
    v_readfirstlane_b32 s3, v2
    v_lshlrev_b32 v5, 8, v4
    v_lshl_add_u32 v5, v3, 4, v5  ; K voffset
    v_lshlrev_b32 v6, 10, v3
    v_lshl_add_u32 v6, v4, 4, v6  ; V voffset
    s_lshl_b32 s16, s2, 18
    s_lshl_b32 s17, s3, 15
    s_add_u32 s16, s16, s17
    """)
    for t in range(1, 8):
        a(f"s_add_u32 s{16+t}, s16, {t*4096}")
    a("""
    s_lshr_b32 s24, s2, 6
    s_lshl_b32 s24, s24, 12
    v_lshlrev_b32 v7, 3, v0
    s_waitcnt lgkmcnt(0)
    """)
    srd(a, 4, 0x4000000)
    srd(a, 8, 0x4000000)
    srd(a, 12, WS_SIZE)
    for s in range(4):
        a(f"s_add_u32 s25, s24, {QP + s*16384}")
        a(f"buffer_load_dwordx2 v[{8+2*s}:{9+2*s}], v7, s[12:15], s25 offen")
    for t in range(8):
        for j in range(4):
            r = KR + t * 16 + j * 4
            a(f"buffer_load_dwordx4 v[{r}:{r+3}], v5, s[4:7], s{16+t} offen offset:{j*64}{NT}")
    for G in range(2):
        for i in range(8):
            r = VR0 + G * 32 + i * 4
            a(f"buffer_load_dwordx4 v[{r}:{r+3}], v6, s[8:11], s{16+2*G+(i>>2)} offen offset:{(i&3)*256}{NT}")
    a(f"""
    s_waitcnt vmcnt(48)
    v_add_f32 v8, v8, v10
    v_add_f32 v9, v9, v11
    v_add_f32 v12, v12, v14
    v_add_f32 v13, v13, v15
    v_add_f32 v8, v8, v12
    v_add_f32 v9, v9, v13
    v_cvt_pk_bf16_f32 v8, v8, v9
    v_lshlrev_b32 v9, 2, v0
    ds_write_b32 v9, v8 offset:{LQ}
    v_and_b32 v9, 7, v1
    v_lshlrev_b32 v9, 8, v9
    v_lshl_add_u32 v9, v3, 4, v9
    s_waitcnt lgkmcnt(0)
    s_barrier
    """)
    for j in range(4):
        a(f"ds_read_b128 v[{QR+4*j}:{QR+4*j+3}], v9 offset:{LQ + j*64}")
    a("s_mov_b32 s26, 0x05040100")
    a("s_mov_b32 s27, 0x07060302")
    a("s_waitcnt lgkmcnt(0)")
    for t in range(8):
        a(f"s_waitcnt vmcnt({44 - 4*t})")
        for j in range(4):
            r = KR + t * 16 + j * 4
            c = "0" if j == 0 else f"v[{SR+4*t}:{SR+4*t+3}]"
            a(f"v_mfma_f32_16x16x32_bf16 v[{SR+4*t}:{SR+4*t+3}], v[{r}:{r+3}], v[{QR+4*j}:{QR+4*j+3}], {c}")
    for G in range(2, 4):
        for i in range(8):
            r = VR1 + (G - 2) * 32 + i * 4
            a(f"buffer_load_dwordx4 v[{r}:{r+3}], v6, s[8:11], s{16+2*G+(i>>2)} offen offset:{(i&3)*256}{NT}")
    a("s_nop 7")
    for r in range(32):
        a(f"v_mov_b32 v{OR_+r}, 0")
    a(f"v_max3_f32 v8, v{SR}, v{SR+1}, v{SR+2}")
    for r in range(3, 31, 2):
        a(f"v_max3_f32 v8, v8, v{SR+r}, v{SR+r+1}")
    a(f"v_max_f32 v8, v8, v{SR+31}")
    a("""
    v_mov_b32 v10, v8
    s_nop 1
    v_permlane16_swap_b32 v8, v10
    v_max_f32 v8, v8, v10
    v_mov_b32 v10, v8
    s_nop 1
    v_permlane32_swap_b32 v8, v10
    v_max_f32 v8, v8, v10
    """)
    a(f"v_mul_f32 v8, {f32(CSC)}, v8")
    a(f"v_mov_b32 v11, {f32(CSC)}")
    a("v_mov_b32 v9, 0")
    for r in range(32):
        a(f"v_fma_f32 v{SR+r}, v{SR+r}, v11, -v8")
    for r in range(32):
        a(f"v_exp_f32 v{SR+r}, v{SR+r}")
    a("s_nop 0")
    for r in range(0, 32, 2):
        a(f"v_cvt_pk_bf16_f32 v{PR+r//2}, v{SR+r}, v{SR+r+1}")
    for r in range(16):
        a(f"v_lshlrev_b32 v10, 16, v{PR+r}")
        a(f"v_and_b32 v12, 0xffff0000, v{PR+r}")
        a(f"v_add_f32 v9, v9, v10")
        a(f"v_add_f32 v9, v9, v12")
    a("""
    v_mov_b32 v10, v9
    s_nop 1
    v_permlane16_swap_b32 v9, v10
    v_add_f32 v9, v9, v10
    v_mov_b32 v10, v9
    s_nop 1
    v_permlane32_swap_b32 v9, v10
    v_add_f32 v9, v9, v10
    """)
    tb = 0
    for G in range(4):
        vb = (VR0 + G * 32) if G < 2 else (VR1 + (G - 2) * 32)
        a(f"s_waitcnt vmcnt({24 - 8*G})")
        for j in range(4):
            T = TR + tb * 8
            tb ^= 1
            for p in range(4):
                ra = vb + (2 * p) * 4 + j
                rb = vb + (2 * p + 1) * 4 + j
                a(f"v_perm_b32 v{T+p}, v{rb}, v{ra}, s26")
                a(f"v_perm_b32 v{T+4+p}, v{rb}, v{ra}, s27")
            a("s_nop 1")
            for h in range(2):
                e = 2 * j + h
                a(f"v_mfma_f32_16x16x32_bf16 v[{OR_+4*e}:{OR_+4*e+3}], v[{T+4*h}:{T+4*h+3}], v[{PR+4*G}:{PR+4*G+3}], v[{OR_+4*e}:{OR_+4*e+3}]")
    a(f"""
    v_mul_u32_u24 v10, {WSZ}, v2
    v_mul_u32_u24 v11, {HS}, v4
    v_add_u32 v10, v10, v11
    v_lshl_add_u32 v10, v3, 7, v10      ; + g*128
    v_add_u32 v10, {LO}, v10
    v_lshlrev_b32 v11, 7, v2
    v_lshl_add_u32 v11, v4, 3, v11      ; w*128 + c*8
    v_cmp_gt_u32 vcc, 8, v4
    s_and_saveexec_b64 s[28:29], vcc
    ds_write_b64 v11, v[8:9] offset:{LM}
    s_nop 7
    """)
    for r in range(4):
        for e in range(0, 8, 2):
            a(f"ds_write2_b32 v10, v{OR_+4*e+r}, v{OR_+4*(e+1)+r} offset0:{r*8+e} offset1:{r*8+e+1}")
    a(f"""
    s_mov_b64 exec, s[28:29]
    v_lshlrev_b32 v10, 3, v2            ; hh*8
    v_mul_u32_u24 v11, {HS}, v2
    v_lshl_add_u32 v11, v1, 3, v11
    s_waitcnt lgkmcnt(0)
    s_barrier
    """)
    for w in range(8):
        a(f"ds_read_b64 v[{16+2*w}:{17+2*w}], v10 offset:{LM + w*128}")
    for w in range(8):
        a(f"ds_read_b64 v[{32+2*w}:{33+2*w}], v11 offset:{LO + w*WSZ}")
    a("""
    s_lshl_b32 s24, s2, 12              ; wg*8*512
    s_add_u32 s24, s24, %d
    v_lshlrev_b32 v12, 9, v2
    v_lshl_add_u32 v12, v1, 3, v12
    s_lshr_b32 s25, s2, 6               ; kv
    s_lshl_b32 s25, s25, 12             ; kv*8*64*8
    s_and_b32 s30, s2, 63
    s_lshl_b32 s30, s30, 3
    s_add_u32 s25, s25, s30
    s_add_u32 s25, s25, %d
    v_lshlrev_b32 v13, 9, v2            ; hh*64*8
    s_waitcnt lgkmcnt(0)
    v_max3_f32 v8, v16, v18, v20
    v_max3_f32 v8, v8, v22, v24
    v_max3_f32 v8, v8, v26, v28
    v_max_f32 v8, v8, v30
    """ % (AO, AML))
    for w in range(8):
        a(f"v_sub_f32 v{16+2*w}, v{16+2*w}, v8")
    for w in range(8):
        a(f"v_exp_f32 v{16+2*w}, v{16+2*w}")
    a("""
    s_nop 0
    v_mul_f32 v9, v16, v17
    v_mul_f32 v14, v16, v32
    v_mul_f32 v15, v16, v33
    """)
    for w in range(1, 8):
        a(f"v_fmac_f32 v9, v{16+2*w}, v{17+2*w}")
        a(f"v_fmac_f32 v14, v{16+2*w}, v{32+2*w}")
        a(f"v_fmac_f32 v15, v{16+2*w}, v{33+2*w}")
    a("""
    buffer_store_dwordx2 v[14:15], v12, s[12:15], s24 offen
    v_cmp_eq_u32 vcc, 0, v1
    s_and_saveexec_b64 s[28:29], vcc
    s_cbranch_execz K2_END
    buffer_store_dwordx2 v[8:9], v13, s[12:15], s25 offen
    """)
    a.label("K2_END")
    a("s_endpgm")
    return LO + 8 * WSZ

def k3(a):
    kernel_head(a, "out_kernel")
    LV, LR = 0, 512
    LF = 4096
    a("""
    s_cmp_ge_u32 s2, 480
    s_cbranch_scc1 K3_END
    s_load_dwordx2 s[4:5], s[0:1], 32    ; wo
    s_load_dwordx2 s[20:21], s[0:1], 72  ; w_down
    s_load_dwordx2 s[12:13], s[0:1], 104 ; ws
    s_load_dwordx2 s[8:9], s[0:1], 96    ; debug
    s_load_dwordx2 s[36:37], s[0:1], 0   ; x
    s_load_dwordx2 s[40:41], s[0:1], 88  ; out
    v_and_b32 v1, 63, v0
    v_lshrrev_b32 v2, 6, v0
    v_lshrrev_b32 v3, 4, v1       ; g
    v_and_b32 v4, 15, v1          ; c
    s_lshr_b32 s16, s2, 3         ; rb
    s_and_b32 s17, s2, 7          ; cb
    s_mov_b32 s6, 0x800000
    s_mov_b32 s18, s16
    s_waitcnt lgkmcnt(0)
    s_cmp_lt_u32 s16, 32
    s_cbranch_scc1 K3_SEL
    s_mov_b64 s[4:5], s[20:21]
    s_mov_b32 s6, 0x700000
    s_sub_u32 s18, s16, 32
    """)
    a.label("K3_SEL")
    a("""
    s_and_b32 s5, s5, 0xffff
    s_mov_b32 s7, 0x00020000
    """)
    srd(a, 12, WS_SIZE)
    srd(a, 8, 256)
    srd(a, 36, 2048)
    srd(a, 40, 2048)
    a("""
    v_lshlrev_b32 v5, 5, v2
    v_lshl_add_u32 v5, v3, 3, v5
    v_lshlrev_b32 v6, 11, v5
    v_lshl_add_u32 v6, v4, 4, v6
    s_lshl_b32 s19, s18, 18
    s_lshl_b32 s22, s17, 8
    s_add_u32 s19, s19, s22
    """)
    first = True
    def wloads():
        for i in range(8):
            a(f"buffer_load_dwordx4 v[{64+4*i}:{67+4*i}], v6, s[4:7], s19 offen offset:{(i&1)*2048}{NT}")
            if i & 1 and i < 7:
                a("s_add_u32 s19, s19, 4096")
    a("""
    s_cmp_lt_u32 s16, 32
    s_cbranch_scc0 K3_H
    """)
    a("""
    s_lshl_b32 s22, s16, 9           ; h*64*8
    s_add_u32 s22, s22, %d
    v_lshlrev_b32 v7, 3, v1
    buffer_load_dwordx2 v[8:9], v7, s[12:15], s22 offen
    ; O partial: AO + ((kv*64 + sg*8 + k)*8 + hh)*512 + dq*16
    s_lshr_b32 s23, s16, 3           ; kv
    s_lshl_b32 s23, s23, 18
    s_and_b32 s24, s16, 7
    s_lshl_b32 s24, s24, 9
    s_add_u32 s23, s23, s24
    s_add_u32 s23, s23, %d
    v_lshrrev_b32 v10, 5, v0         ; sg
    v_and_b32 v11, 31, v0            ; dq
    v_lshlrev_b32 v12, 15, v10
    v_lshl_add_u32 v12, v11, 4, v12
    """ % (AML, AO))
    for k in range(8):
        a(f"buffer_load_dwordx4 v[{32+4*k}:{35+4*k}], v12, s[12:15], s23 offen")
        if k < 7:
            a("s_add_u32 s23, s23, 4096")
    wloads()
    a("""
    s_waitcnt vmcnt(16)
    v_mov_b32 v13, v8
    """)
    wave_allreduce(a, 13, 14, "v_max_f32")
    a("""
    v_sub_f32 v8, v8, v13
    v_exp_f32 v8, v8
    s_nop 0
    v_mul_f32 v9, v8, v9
    """)
    wave_allreduce(a, 9, 14, "v_add_f32")
    a("""
    v_rcp_f32 v9, v9
    v_lshlrev_b32 v14, 5, v10        ; sg*8*4
    v_mul_f32 v8, v8, v9             ; beta_s
    s_nop 0
    """)
    for k in range(8):
        a(f"v_add_u32 v15, {4*k}, v14")
        a(f"ds_bpermute_b32 v{16+k}, v15, v8")
    a("s_waitcnt vmcnt(8) lgkmcnt(0)")
    for d in range(4):
        a(f"v_mul_f32 v{24+d}, v16, v{32+d}")
    for k in range(1, 8):
        for d in range(4):
            a(f"v_fmac_f32 v{24+d}, v{16+k}, v{32+4*k+d}")
    a(f"""
    s_nop 1
    v_permlane32_swap_b32 v24, v25
    v_permlane32_swap_b32 v26, v27
    v_add_f32 v24, v24, v25
    v_add_f32 v26, v26, v27
    v_lshrrev_b32 v14, 5, v1
    v_lshl_add_u32 v14, v11, 2, v14
    v_lshlrev_b32 v14, 2, v14
    v_lshl_add_u32 v14, v2, 9, v14
    ds_write2_b32 v14, v24, v26 offset0:{LR//4} offset1:{LR//4+2}
    s_waitcnt lgkmcnt(0)
    s_barrier
    v_lshlrev_b32 v14, 3, v1
    ds_read_b64 v[16:17], v14 offset:{LR}
    ds_read_b64 v[18:19], v14 offset:{LR+512}
    ds_read_b64 v[20:21], v14 offset:{LR+1024}
    ds_read_b64 v[22:23], v14 offset:{LR+1536}
    v_lshlrev_b32 v14, 2, v1
    s_waitcnt lgkmcnt(0)
    v_add_f32 v16, v16, v18
    v_add_f32 v17, v17, v19
    v_add_f32 v20, v20, v22
    v_add_f32 v21, v21, v23
    v_add_f32 v16, v16, v20
    v_add_f32 v17, v17, v21
    v_cvt_pk_bf16_f32 v16, v16, v17
    ds_write_b32 v14, v16 offset:{LV}
    s_branch K3_GEMV
    """)
    a.label("K3_H")
    a("""
    v_and_b32 v7, 127, v0
    v_lshlrev_b32 v7, 2, v7
    s_lshl_b32 s22, s18, 9
    """)
    for s in range(4):
        a(f"s_add_u32 s23, s22, {GP + s*3584*4}")
        a(f"buffer_load_dword v{8+s}, v7, s[12:15], s23 offen")
        a(f"s_add_u32 s23, s22, {UP + s*3584*4}")
        a(f"buffer_load_dword v{12+s}, v7, s[12:15], s23 offen")
    wloads()
    a(f"""
    s_waitcnt vmcnt(8)
    v_add_f32 v8, v8, v9
    v_add_f32 v10, v10, v11
    v_add_f32 v12, v12, v13
    v_add_f32 v14, v14, v15
    v_add_f32 v8, v8, v10
    v_add_f32 v12, v12, v14
    v_cvt_pk_bf16_f32 v8, v8, v12
    v_and_b32 v12, 0xffff0000, v8      ; u
    v_lshlrev_b32 v8, 16, v8           ; gate
    v_mul_f32 v9, {f32(-LOG2E)}, v8
    v_exp_f32 v9, v9
    s_nop 0
    v_add_f32 v9, 1.0, v9
    v_rcp_f32 v9, v9
    s_nop 0
    v_mul_f32 v8, v8, v9
    v_cvt_pk_bf16_f32 v8, v8, v8
    v_lshlrev_b32 v8, 16, v8
    v_mul_f32 v8, v8, v12
    v_cvt_pk_bf16_f32 v8, v8, v8
    v_lshrrev_b32 v7, 1, v7
    ds_write_b16 v7, v8 offset:{LV}
    """)
    a.label("K3_GEMV")
    a(f"""
    s_waitcnt lgkmcnt(0)
    s_barrier
    v_lshlrev_b32 v14, 1, v5
    ds_read_b128 v[8:11], v14 offset:{LV}
    """)
    for r in range(16, 24):
        a(f"v_mov_b32 v{r}, 0")
    a("s_waitcnt lgkmcnt(0)")
    gemv_rows(a, 8, 64, 8, 16, 24, 25, 0)
    reduce8(a, 16)
    a(f"""
    v_and_b32 v24, 1, v3
    v_lshlrev_b32 v24, 1, v24
    v_lshrrev_b32 v25, 1, v3
    v_or_b32 v24, v24, v25
    v_lshl_add_u32 v24, v4, 3, v24
    v_lshlrev_b32 v24, 2, v24
    v_lshl_add_u32 v24, v2, 9, v24
    ds_write2_b32 v24, v16, v20 offset0:{LR//4} offset1:{LR//4+4}
    s_waitcnt lgkmcnt(0)
    s_barrier
    v_and_b32 v7, 127, v0
    v_lshlrev_b32 v24, 2, v7
    ds_read2st64_b32 v[16:17], v24 offset0:{LR//256} offset1:{LR//256+2}
    ds_read2st64_b32 v[18:19], v24 offset0:{LR//256+4} offset1:{LR//256+6}
    s_lshl_b32 s22, s16, 12
    s_lshl_b32 s23, s17, 9
    s_add_u32 s23, s23, {OP}
    s_add_u32 s22, s22, s23
    s_waitcnt lgkmcnt(0)
    v_add_f32 v16, v16, v17
    v_add_f32 v18, v18, v19
    v_add_f32 v16, v16, v18
    v_cmp_gt_u32 vcc, 128, v0
    s_and_saveexec_b64 s[30:31], vcc
    s_cbranch_execz K3_NOST
    buffer_store_dword v16, v24, s[12:15], s22 offen sc1
    """)
    a.label("K3_NOST")
    a(f"""
    s_mov_b64 exec, s[30:31]
    s_waitcnt vmcnt(0)
    s_barrier
    v_cmp_eq_u32 vcc, 0, v0
    s_and_saveexec_b64 s[30:31], vcc
    s_cbranch_execz K3_NOAT
    v_mov_b32 v16, 1
    s_lshl_b32 s22, s17, 2
    buffer_atomic_add v16, off, s[8:11], s22 sc0
    v_mov_b32 v17, {LF}
    s_waitcnt vmcnt(0)
    ds_write_b32 v17, v16
    s_waitcnt lgkmcnt(0)
    """)
    a.label("K3_NOAT")
    a(f"""
    s_mov_b64 exec, s[30:31]
    s_barrier
    v_mov_b32 v17, {LF}
    ds_read_b32 v16, v17
    s_waitcnt lgkmcnt(0)
    v_readfirstlane_b32 s22, v16
    s_cmp_eq_u32 s22, 59
    s_cbranch_scc0 K3_END
    v_cmp_gt_u32 vcc, 128, v0
    s_and_saveexec_b64 s[30:31], vcc
    s_cbranch_execz K3_END
    s_mov_b32 s22, s23
    """)
    for r in range(60):
        a(f"buffer_load_dword v{32+r}, v24, s[12:15], s22 offen sc1")
        if r < 59:
            a("s_add_u32 s22, s22, 4096")
    a(f"""
    s_mov_b32 s22, {SC}
    buffer_load_dwordx4 v[8:11], off, s[12:15], s22
    s_lshl_b32 s22, s17, 8
    v_lshlrev_b32 v25, 1, v7
    buffer_load_ushort v12, v25, s[36:39], s22 offen
    s_waitcnt vmcnt(30)
    """)
    for r in range(0, 32, 2):
        a(f"v_add_f32 v{32+r}, v{32+r}, v{33+r}")
    for st in (2, 4, 8, 16):
        for r in range(0, 32, 2 * st):
            a(f"v_add_f32 v{32+r}, v{32+r}, v{32+r+st}")
    a("s_waitcnt vmcnt(0)")
    for r in range(0, 28, 2):
        a(f"v_add_f32 v{64+r}, v{64+r}, v{65+r}")
    for r in range(2, 28, 2):
        a(f"v_add_f32 v64, v64, v{64+r}")
    a("""
    v_cvt_pk_bf16_f32 v32, v32, v64
    v_and_b32 v64, 0xffff0000, v32      ; y
    v_lshlrev_b32 v32, 16, v32          ; a
    v_mul_f32 v64, v64, v10             ; y*sr
    v_mul_f32 v32, v32, v8              ; g*a
    v_cvt_pk_bf16_f32 v32, v32, v64
    v_and_b32 v64, 0xffff0000, v32
    v_lshlrev_b32 v32, 16, v32
    v_lshlrev_b32 v12, 16, v12          ; x
    v_add_f32 v64, v64, v12             ; b
    v_cvt_pk_bf16_f32 v64, v64, v64
    v_lshlrev_b32 v64, 16, v64
    v_mul_f32 v64, v64, v9              ; (1-g)*b
    v_cvt_pk_bf16_f32 v64, v64, v64
    v_lshlrev_b32 v64, 16, v64
    v_add_f32 v32, v32, v64
    v_cvt_pk_bf16_f32 v32, v32, v32
    buffer_store_short v32, v25, s[40:43], s22 offen
    """)
    a.label("K3_END")
    a("s_endpgm")

def build():
    a = A()
    k1(a)
    lds2 = k2(a)
    k3(a)
    hdr = f"""; generated: 3-kernel launch list (q/gate/up gemv ; split-K attention ; combine + wo/w_down gemv + final)
; @launch kernel=gemv1_kernel grid=(353,1,1) block=(256,1,1) lds=2048
; @launch kernel=attn_kernel grid=(256,1,1) block=(512,1,1) lds={lds2}
; @launch kernel=out_kernel grid=(480,1,1) block=(256,1,1) lds=4160
.amdgcn_target "amdgcn-amd-amdhsa--gfx950"
.text
"""
    tail = '.section .rodata,"a"\n' + descriptor("gemv1_kernel", 96, 40) + descriptor("attn_kernel", 256, 40) + descriptor("out_kernel", 96, 48)
    return hdr + a.text() + tail

if __name__ == "__main__":
    out = sys.argv[1] if len(sys.argv) > 1 else f"cdna_kernels/{NAME}.s"
    open(out, "w").write(build())
    print("wrote", out)
```

```python
import sys, struct

NAME = "gated_mix__gqa_block_cached__moe_arch_mod__decode"

def f32(x):
    return "0x%08x" % struct.unpack("<I", struct.pack("<f", x))[0]

QP = 0x000000
GP = 0x040000
AO = 0x100000
AML = 0x200000
OP = 0x300000
PROFB = 0x380000
WS_SIZE = 268435456

LOG2E = 1.4426950408889634
CSC = LOG2E * (128 ** -0.5)

LQP = 0
LGP = 2048
LQ = 6144
LM = 8192
LO = 9216
HS = 528
WSZ = 8 * HS
LOUT = LO + 8 * WSZ
LTAG = LOUT + 8192
LDS_TOTAL = LTAG + 64

class Cfg:
    pace = 12
    prof = False
    nt = " nt"
    limit = 200000
    sleep = 2
    early = 2
    guearly = 1
    dbgat = 0

class A:
    def __init__(self):
        self.l = []
        self.vm = []
    def __call__(self, s):
        for line in s.strip("\n").split("\n"):
            line = line.strip()
            if line:
                self.l.append("    " + line)
    def label(self, s):
        self.l.append(s + ":")
    def raw(self, s):
        self.l.append(s)
    def text(self):
        return "\n".join(self.l) + "\n"
    def vmem(self, s, tag, optional=False):
        self(s)
        self.vm.append((tag, optional))
    def cnt_after(self, tag):
        idx = max(i for i, (t, o) in enumerate(self.vm) if t == tag)
        return sum(1 for (t, o) in self.vm[idx + 1:] if not o)
    def wait_for(self, tag, extra=""):
        n = self.cnt_after(tag)
        assert n <= 63
        self(f"s_waitcnt vmcnt({n}){extra}")

def srd(a, sb, size):
    a(f"""
    s_and_b32 s{sb+1}, s{sb+1}, 0xffff
    s_mov_b32 s{sb+2}, {size}
    s_mov_b32 s{sb+3}, 0x00020000
    """)

def dpp(a, op, d, s0, s1, ctrl):
    a(f"{op}_dpp v{d}, v{s0}, v{s1} {ctrl} row_mask:0xf bank_mask:0xf")

def row_allreduce(a, regs, op):
    for r in (8, 4, 2, 1):
        a("s_nop 1")
        for v in regs:
            dpp(a, op, v, v, v, f"row_ror:{r}")

def wave_allreduce(a, v, t, op):
    row_allreduce(a, [v], op)
    a(f"""
    v_mov_b32 v{t}, v{v}
    s_nop 1
    v_permlane16_swap_b32 v{v}, v{t}
    {op} v{v}, v{v}, v{t}
    v_mov_b32 v{t}, v{v}
    s_nop 1
    v_permlane32_swap_b32 v{v}, v{t}
    {op} v{v}, v{v}, v{t}
    """)

def reduce8(a, acc):
    a("s_nop 1")
    for b in (0, 2, 4, 6):
        a(f"v_permlane32_swap_b32 v{acc+b}, v{acc+b+1}")
    for b in (0, 2, 4, 6):
        a(f"v_add_f32 v{acc+b}, v{acc+b}, v{acc+b+1}")
    a("s_nop 1")
    a(f"v_permlane16_swap_b32 v{acc}, v{acc+2}")
    a(f"v_permlane16_swap_b32 v{acc+4}, v{acc+6}")
    a(f"v_add_f32 v{acc}, v{acc}, v{acc+2}")
    a(f"v_add_f32 v{acc+4}, v{acc+4}, v{acc+6}")

def gemv_rows(a, nrows, wbase, xp, acc, t0, t1):
    for r in range(8):
        a(f"v_mov_b32 v{acc+r}, 0")
    for i in range(nrows):
        xr = xp + i // 2
        if i % 2 == 0:
            a(f"v_and_b32 v{t0}, 0xffff, v{xr}")
            a(f"v_lshlrev_b32 v{t1}, 16, v{xr}")
        else:
            a(f"v_lshrrev_b32 v{t0}, 16, v{xr}")
            a(f"v_and_b32 v{t1}, 0xffff0000, v{xr}")
        for d in range(4):
            a(f"v_dot2c_f32_bf16 v{acc+2*d}, v{wbase+4*i+d}, v{t0}")
            a(f"v_dot2c_f32_bf16 v{acc+2*d+1}, v{wbase+4*i+d}, v{t1}")

SR, QR, VR0, KR = 16, 48, 64, 128
VR1, OR_, TR, PR = 128, 192, 224, 240
sK, sV, sWS, sX, sWQ, sGU, sDBG, sOUT, sWR, sGW = 4, 8, 12, 16, 20, 24, 28, 32, 36, 40
sWO, sWD = 84, 88
sG, sJ = 44, 45
sT = 48
sPA, sPB = 72, 73
sEX = 74
sIT = 76
sHASGU, sHASWD = 77, 78
sGUO = 79
sGUS = 80
sGUX = 81
sH = 82
sCBO = 83
sTAG = 47
PT0 = 92

def build(cfg):
    a = A()
    NT = cfg.nt
    kname = NAME + "_kernel"
    nprof = [0]
    def prof():
        if cfg.prof:
            i = nprof[0]; nprof[0] += 1
            a(f"""
            s_memrealtime s[70:71]
            s_waitcnt lgkmcnt(0)
            s_mov_b32 s{PT0+i}, s70
            """)
    def prof_at(i, common=False):
        if cfg.prof and not (common and cfg.dbgat):
            a(f"""
            s_memrealtime s[70:71]
            s_waitcnt lgkmcnt(0)
            s_mov_b32 s{PT0+i}, s70
            """)

    a.raw(f".globl {kname}")
    a.raw(".p2align 8")
    a.raw(f".type {kname},@function")
    a.label(kname)
    a(f"""
    s_cmp_ge_u32 s2, 256
    s_cbranch_scc1 L_END
    s_load_dwordx2 s[{sX}:{sX+1}], s[0:1], 0
    s_load_dwordx2 s[{sWQ}:{sWQ+1}], s[0:1], 24
    s_load_dwordx2 s[{sK}:{sK+1}], s[0:1], 8
    s_load_dwordx2 s[{sV}:{sV+1}], s[0:1], 16
    s_load_dwordx2 s[{sWS}:{sWS+1}], s[0:1], 104
    s_load_dwordx2 s[{sGU}:{sGU+1}], s[0:1], 56
    s_load_dwordx2 s[62:63], s[0:1], 64
    s_load_dwordx2 s[{sDBG}:{sDBG+1}], s[0:1], 96
    s_load_dwordx2 s[{sWO}:{sWO+1}], s[0:1], 32
    s_load_dwordx2 s[{sWD}:{sWD+1}], s[0:1], 72
    s_load_dwordx2 s[{sOUT}:{sOUT+1}], s[0:1], 88
    s_load_dwordx2 s[{sWR}:{sWR+1}], s[0:1], 48
    s_load_dwordx2 s[{sGW}:{sGW+1}], s[0:1], 80
    v_and_b32 v1, 63, v0
    v_lshrrev_b32 v2, 6, v0
    v_lshrrev_b32 v3, 4, v1       ; g4
    v_and_b32 v4, 15, v1          ; c16
    s_nop 0
    v_readfirstlane_b32 s3, v2
    s_lshr_b32 s{sG}, s2, 6
    s_and_b32 s{sJ}, s2, 63
    v_lshlrev_b32 v5, 8, v4
    v_lshl_add_u32 v5, v3, 4, v5  ; K voffset
    v_lshlrev_b32 v6, 10, v3
    v_lshl_add_u32 v6, v4, 4, v6  ; V voffset
    s_lshl_b32 s{sT}, s2, 18
    s_lshl_b32 s56, s3, 15
    s_add_u32 s{sT}, s{sT}, s56
    """)
    for t in range(1, 8):
        a(f"s_add_u32 s{sT+t}, s{sT}, {t*4096}")
    a(f"""
    v_lshrrev_b32 v8, 3, v1             ; l>>3
    v_and_b32 v9, 7, v1
    v_lshlrev_b32 v7, 15, v8
    v_lshl_add_u32 v7, v9, 4, v7
    v_lshlrev_b32 v8, 3, v8             ; x voffset
    s_lshr_b32 s57, s{sJ}, 4            ; ks
    s_and_b32 s58, s{sJ}, 15            ; cb
    s_lshl_b32 s56, s57, 21
    s_lshl_b32 s59, s3, 18
    s_add_u32 s56, s56, s59
    s_lshl_b32 s59, s{sG}, 11
    s_add_u32 s56, s56, s59
    s_lshl_b32 s59, s58, 7
    s_add_u32 s56, s56, s59
    s_lshl_b32 s59, s57, 9
    s_lshl_b32 s60, s3, 6
    s_add_u32 s59, s59, s60             ; x soffset
    s_lshl_b32 s61, s57, 15
    s_lshl_b32 s60, s{sG}, 13
    s_add_u32 s61, s61, s60
    s_lshl_b32 s60, s58, 9
    s_add_u32 s61, s61, s60
    s_cmp_lt_u32 s2, 224
    s_cselect_b32 s{sHASGU}, 1, 0
    s_cmp_ge_u32 s2, 32
    s_cselect_b32 s{sHASWD}, 1, 0
    s_cmp_ge_u32 s2, 112
    s_cselect_b32 s64, 1, 0             ; mat
    s_cselect_b32 s65, 112, 0
    s_sub_u32 s65, s2, s65              ; u'
    s_mul_i32 s66, s65, 2341
    s_lshr_b32 s66, s66, 16             ; ks2
    s_mul_i32 s67, s66, 28
    s_sub_u32 s67, s65, s67             ; cbk
    s_lshl_b32 s68, s66, 8
    s_lshl_b32 s69, s3, 5
    s_add_u32 s68, s68, s69
    s_lshl_b32 s{sGUX}, s68, 1
    s_mul_i32 s{sGUS}, s68, 7168
    s_lshl_b32 s69, s67, 8
    s_add_u32 s{sGUS}, s{sGUS}, s69
    s_mul_i32 s{sGUO}, s64, 114688
    s_mul_i32 s69, s66, 28672
    s_add_u32 s{sGUO}, s{sGUO}, s69
    s_lshl_b32 s69, s67, 10
    s_add_u32 s{sGUO}, s{sGUO}, s69
    s_add_u32 s{sGUO}, s{sGUO}, {GP}
    v_mul_u32_u24 v9, 57344, v3
    v_lshl_add_u32 v9, v4, 4, v9
    s_lshr_b32 s{sH}, s{sJ}, 3
    s_lshl_b32 s69, s{sG}, 3
    s_add_u32 s{sH}, s{sH}, s69         ; head
    s_and_b32 s{sCBO}, s2, 7
    s_mov_b32 s{sPA}, 0x05040100
    s_mov_b32 s{sPB}, 0x07060302
    s_waitcnt lgkmcnt(0)
    s_cmp_eq_u32 s64, 0
    s_cbranch_scc1 L_GSEL
    s_mov_b64 s[{sGU}:{sGU+1}], s[62:63]
    """)
    a.label("L_GSEL")
    srd(a, sX, 2048)
    srd(a, sWQ, 0x800000)
    srd(a, sK, 0x4000000)
    srd(a, sV, 0x4000000)
    srd(a, sWS, WS_SIZE)
    srd(a, sGU, 0x700000)
    srd(a, sDBG, 256)
    srd(a, sWO, 0x800000)
    srd(a, sWD, 0x700000)
    srd(a, sOUT, 2048)
    srd(a, sWR, 2048)
    srd(a, sGW, 2048)
    prof_at(0)

    def issue_q():
        a.vmem(f"buffer_load_dwordx2 v[10:11], v8, s[{sX}:{sX+3}], s59 offen", "xq")
        for i in range(4):
            a.vmem(f"buffer_load_dwordx4 v[{16+4*i}:{19+4*i}], v7, s[{sWQ}:{sWQ+3}], s56 offen{NT}", "wq")
            if i < 3:
                a("s_add_u32 s56, s56, 8192")
    def issue_gu():
        a(f"v_lshlrev_b32 v12, 4, v3")
        a.vmem(f"buffer_load_dwordx4 v[12:15], v12, s[{sX}:{sX+3}], s{sGUX} offen", "xgu")
        for i in range(8):
            a.vmem(f"buffer_load_dwordx4 v[{32+4*i}:{35+4*i}], v9, s[{sGU}:{sGU+3}], s{sGUS} offen{NT}", "gu")
            if i < 7:
                a(f"s_add_u32 s{sGUS}, s{sGUS}, 7168")
    def issue_k(t):
        for j in range(4):
            r = KR + t * 16 + j * 4
            a.vmem(f"buffer_load_dwordx4 v[{r}:{r+3}], v5, s[{sK}:{sK+3}], s{sT+t} offen offset:{j*64}{NT}", f"k{t}")
    def issue_v(G, half):
        base = (VR0 + G * 32) if G < 2 else (VR1 + (G - 2) * 32)
        for i in range(half * 4, half * 4 + 4):
            r = base + i * 4
            a.vmem(f"buffer_load_dwordx4 v[{r}:{r+3}], v6, s[{sV}:{sV+3}], s{sT+2*G+(i>>2)} offen offset:{(i&3)*256}{NT}", f"v{G}")
    def q_partial():
        gemv_rows(a, 4, 16, 10, 64, 72, 73)
        reduce8(a, 64)
        a("s_nop 1")
        dpp(a, "v_add_f32", 64, 64, 64, "row_ror:8")
        dpp(a, "v_add_f32", 68, 68, 68, "row_ror:8")
        a(f"""
        v_and_b32 v72, 1, v3
        v_lshlrev_b32 v72, 1, v72
        v_lshrrev_b32 v73, 1, v3
        v_or_b32 v72, v72, v73             ; sigma(g4)
        v_and_b32 v73, 7, v1
        v_lshl_add_u32 v73, v73, 3, v72
        v_lshlrev_b32 v73, 2, v73
        v_lshl_add_u32 v73, v2, 8, v73
        ds_write2_b32 v73, v64, v68 offset0:{LQP//4} offset1:{LQP//4+4}
        """)
    def gu_partial():
        gemv_rows(a, 8, 32, 12, 74, 72, 73)
        reduce8(a, 74)
        a(f"""
        v_and_b32 v72, 1, v3
        v_lshlrev_b32 v72, 1, v72
        v_lshrrev_b32 v73, 1, v3
        v_or_b32 v72, v72, v73             ; sigma(g4)
        v_lshl_add_u32 v73, v4, 3, v72
        v_lshlrev_b32 v73, 2, v73
        v_lshl_add_u32 v73, v2, 9, v73
        v_add_u32 v73, {LGP}, v73
        ds_write2_b32 v73, v74, v78 offset0:0 offset1:4
        """)

    a(f"""
    s_cmp_eq_u32 s3, 0
    s_cbranch_scc1 L_W0
    """)
    for has_gu in (1, 0):
        a.vm = []
        if has_gu:
            a(f"""
            s_cmp_eq_u32 s{sHASGU}, 0
            s_cbranch_scc1 L_BULK_NOGU
            """)
        else:
            a.label("L_BULK_NOGU")
        issue_q()
        if has_gu and cfg.guearly:
            issue_gu()
        for t in range(cfg.early):
            issue_k(t)
        a.wait_for("wq")
        q_partial()
        if has_gu and not cfg.guearly:
            issue_gu()
        a("""
        s_waitcnt lgkmcnt(0)
        s_barrier
        """)
        prof_at(1)
        for t in range(cfg.early, 2):
            issue_k(t)
        if has_gu:
            a.wait_for("gu")
            gu_partial()
        for t in range(2, 8):
            a(f"s_waitcnt vmcnt({cfg.pace})")
            issue_k(t)
        for G in range(2):
            for h in range(2):
                a(f"s_waitcnt vmcnt({cfg.pace})")
                issue_v(G, h)
        prof_at(2)
        a("""
        s_waitcnt lgkmcnt(0)
        s_barrier
        s_branch L_COMMON
        """)
    a.label("L_W0")
    a.vm = []
    a(f"""
    s_memrealtime s[64:65]
    v_mov_b32 v75, 0
    s_waitcnt lgkmcnt(0)
    s_or_b32 s{sTAG}, s64, 1
    v_mov_b32 v74, s{sTAG}
    s_mov_b64 exec, 1
    buffer_atomic_cmpswap v[74:75], off, s[{sDBG}:{sDBG+3}], 0 sc0
    s_mov_b64 exec, -1
    """)
    issue_q()
    a(f"""
    v_mov_b32 v64, -1
    v_mov_b32 v65, -1
    v_mov_b32 v66, -1
    v_mov_b32 v67, -1
    v_lshlrev_b32 v68, 4, v1
    v_lshlrev_b32 v70, 9, v1
    s_lshl_b32 s64, s2, 12
    s_add_u32 s64, s64, {AO}
    buffer_store_dwordx4 v[64:67], v68, s[{sWS}:{sWS+3}], s64 offen sc1
    buffer_store_dwordx4 v[64:67], v68, s[{sWS}:{sWS+3}], s64 offen offset:1024 sc1
    buffer_store_dwordx4 v[64:67], v68, s[{sWS}:{sWS+3}], s64 offen offset:2048 sc1
    buffer_store_dwordx4 v[64:67], v68, s[{sWS}:{sWS+3}], s64 offen offset:3072 sc1
    s_lshl_b32 s64, s{sG}, 12
    s_lshl_b32 s65, s{sJ}, 3
    s_add_u32 s64, s64, s65
    s_add_u32 s64, s64, {AML}
    s_mov_b64 exec, 0xff
    buffer_store_dwordx2 v[64:65], v70, s[{sWS}:{sWS+3}], s64 offen sc1
    s_mov_b64 exec, -1
    """)
    if cfg.prof and cfg.dbgat == 1:
        a("s_waitcnt vmcnt(10)")
        prof_at(3)
        a("s_waitcnt vmcnt(5)")
        prof_at(4)
        a("s_waitcnt vmcnt(0)")
        prof_at(5)
    a(f"""
    s_waitcnt vmcnt(0)
    v_readfirstlane_b32 s64, v74
    s_cmp_eq_u32 s64, 0
    s_cselect_b32 s{sTAG}, s{sTAG}, s64
    v_mov_b32 v74, s{sTAG}
    v_mov_b32 v75, {LTAG}
    ds_write_b32 v75, v74
    """)
    q_partial()
    a(f"""
    s_waitcnt lgkmcnt(0)
    s_barrier
    """)
    prof_at(1)
    a(f"""
    v_lshlrev_b32 v72, 2, v1
    ds_read2st64_b32 v[64:65], v72 offset0:{LQP//256} offset1:{LQP//256+1}
    ds_read2st64_b32 v[66:67], v72 offset0:{LQP//256+2} offset1:{LQP//256+3}
    ds_read2st64_b32 v[68:69], v72 offset0:{LQP//256+4} offset1:{LQP//256+5}
    ds_read2st64_b32 v[70:71], v72 offset0:{LQP//256+6} offset1:{LQP//256+7}
    v_lshlrev_b32 v72, 3, v1
    s_waitcnt lgkmcnt(0)
    v_add_f32 v64, v64, v65
    v_add_f32 v66, v66, v67
    v_add_f32 v68, v68, v69
    v_add_f32 v70, v70, v71
    v_add_f32 v64, v64, v66
    v_add_f32 v68, v68, v70
    v_add_f32 v64, v64, v68
    v_mov_b32 v65, s{sTAG}
    buffer_store_dwordx2 v[64:65], v72, s[{sWS}:{sWS+3}], s61 offen sc1
    s_cmp_eq_u32 s{sHASGU}, 0
    s_cbranch_scc1 L_W0_C
    """)
    issue_gu()
    a("s_waitcnt vmcnt(0)")
    gu_partial()
    a.label("L_W0_C")
    if cfg.dbgat == 2:
        prof_at(3)
    a(f"""
    s_mov_b32 s{sIT}, 0
    s_lshl_b32 s64, s{sG}, 13
    s_add_u32 s64, s64, {QP}
    v_lshlrev_b32 v72, 15, v3
    v_lshl_add_u32 v72, v4, 9, v72
    """)
    a.label("L_POLLQ")
    a(f"""
    buffer_load_dwordx2 v[64:65], v72, s[{sWS}:{sWS+3}], s64 offen sc1
    s_waitcnt vmcnt(0)
    v_cmp_ne_u32 vcc, s{sTAG}, v65
    s_cbranch_vccz L_POLLQ_DONE
    s_sleep {cfg.sleep}
    s_add_u32 s{sIT}, s{sIT}, 1
    s_cmp_lt_u32 s{sIT}, {cfg.limit}
    s_cbranch_scc1 L_POLLQ
    """)
    a.label("L_POLLQ_DONE")
    if cfg.dbgat == 2:
        prof_at(4)
        a(f"s_mov_b32 s{PT0+9}, s{sIT}")
    a(f"""
    v_lshlrev_b32 v72, 4, v1
    s_mov_b32 s{sIT}, 0
    """)
    a.label("L_GATH")
    for sp in range(4):
        a(f"s_add_u32 s65, s64, {sp*32768}")
        a(f"s_add_u32 s66, s64, {sp*32768+4096}")
        for k in range(8):
            r = 128 + (k * 4 + sp) * 4
            a(f"buffer_load_dwordx4 v[{r}:{r+3}], v72, s[{sWS}:{sWS+3}], s{65+(k>>2)} offen offset:{(k&3)*1024} sc1")
    a(f"""
    v_mov_b32 v64, 0
    s_waitcnt vmcnt(0)
    """)
    for r in range(128, 256, 4):
        a(f"v_xor_b32 v65, s{sTAG}, v{r+1}")
        a(f"v_xor_b32 v66, s{sTAG}, v{r+3}")
        a(f"v_or3_b32 v64, v64, v65, v66")
    a(f"""
    v_cmp_ne_u32 vcc, 0, v64
    s_cbranch_vccz L_GATH_DONE
    s_sleep {cfg.sleep}
    s_add_u32 s{sIT}, s{sIT}, 1
    s_cmp_lt_u32 s{sIT}, {cfg.limit}
    s_cbranch_scc1 L_GATH
    """)
    a.label("L_GATH_DONE")
    if cfg.dbgat == 2:
        prof_at(5)
    a("v_lshlrev_b32 v72, 2, v1")
    for k in range(8):
        b = 128 + k * 16
        for d in (0, 2):
            a(f"v_add_f32 v{b+d}, v{b+d}, v{b+4+d}")
            a(f"v_add_f32 v{b+8+d}, v{b+8+d}, v{b+12+d}")
            a(f"v_add_f32 v{b+d}, v{b+d}, v{b+8+d}")
        a(f"v_cvt_pk_bf16_f32 v{b}, v{b}, v{b+2}")
        a(f"ds_write_b32 v72, v{b} offset:{LQ + k*256}")
    a.label("L_POLLA_DONE")
    prof_at(2)
    a.vm = []
    a("s_waitcnt lgkmcnt(0)")
    for t in range(8):
        issue_k(t)
    for G in range(2):
        for h in range(2):
            issue_v(G, h)
    a("""
    s_barrier
    """)
    a.label("L_COMMON")
    prof_at(3, True)
    a(f"""
    v_and_b32 v9, 7, v1
    v_lshlrev_b32 v9, 8, v9
    v_lshl_add_u32 v9, v3, 4, v9
    """)
    for j in range(4):
        a(f"ds_read_b128 v[{QR+4*j}:{QR+4*j+3}], v9 offset:{LQ + j*64}")
    a(f"""
    v_mov_b32 v10, {LTAG}
    ds_read_b32 v10, v10
    s_waitcnt lgkmcnt(0)
    v_readfirstlane_b32 s{sTAG}, v10
    """)
    a(f"""
    s_cmp_eq_u32 s{sHASGU}, 0
    s_cbranch_scc1 L_NOGUST
    v_lshlrev_b32 v10, 2, v4
    v_lshl_add_u32 v10, v2, 6, v10        ; (w*16 + c16)*4
    v_add_u32 v11, {LGP}, v10
    ds_read2st64_b32 v[16:17], v11 offset0:0 offset1:2
    ds_read2st64_b32 v[18:19], v11 offset0:4 offset1:6
    ds_read2st64_b32 v[20:21], v11 offset0:8 offset1:10
    ds_read2st64_b32 v[22:23], v11 offset0:12 offset1:14
    s_waitcnt lgkmcnt(0)
    v_add_f32 v16, v16, v17
    v_add_f32 v18, v18, v19
    v_add_f32 v20, v20, v21
    v_add_f32 v22, v22, v23
    v_add_f32 v16, v16, v18
    v_add_f32 v20, v20, v22
    v_add_f32 v16, v16, v20
    v_mov_b32 v17, s{sTAG}
    v_lshlrev_b32 v10, 1, v10
    s_mov_b64 exec, 0xffff
    """)
    a.vmem(f"buffer_store_dwordx2 v[16:17], v10, s[{sWS}:{sWS+3}], s{sGUO} offen sc1", "gust", optional=True)
    a("s_mov_b64 exec, -1")
    a.label("L_NOGUST")
    a("s_waitcnt lgkmcnt(0)")
    for t in range(8):
        a.wait_for(f"k{t}")
        for j in range(4):
            r = KR + t * 16 + j * 4
            c = "0" if j == 0 else f"v[{SR+4*t}:{SR+4*t+3}]"
            a(f"v_mfma_f32_16x16x32_bf16 v[{SR+4*t}:{SR+4*t+3}], v[{r}:{r+3}], v[{QR+4*j}:{QR+4*j+3}], {c}")
        if t == 1:
            issue_v(2, 0); issue_v(2, 1)
        if t == 3:
            issue_v(3, 0); issue_v(3, 1)
    prof_at(4, True)
    a("s_nop 7")
    for r in range(32):
        a(f"v_mov_b32 v{OR_+r}, 0")
    a(f"v_max3_f32 v8, v{SR}, v{SR+1}, v{SR+2}")
    for r in range(3, 31, 2):
        a(f"v_max3_f32 v8, v8, v{SR+r}, v{SR+r+1}")
    a(f"v_max_f32 v8, v8, v{SR+31}")
    a("""
    v_mov_b32 v10, v8
    s_nop 1
    v_permlane16_swap_b32 v8, v10
    v_max_f32 v8, v8, v10
    v_mov_b32 v10, v8
    s_nop 1
    v_permlane32_swap_b32 v8, v10
    v_max_f32 v8, v8, v10
    """)
    a(f"v_mul_f32 v8, {f32(CSC)}, v8")
    a(f"v_mov_b32 v11, {f32(CSC)}")
    a("v_mov_b32 v9, 0")
    for r in range(32):
        a(f"v_fma_f32 v{SR+r}, v{SR+r}, v11, -v8")
    for r in range(32):
        a(f"v_exp_f32 v{SR+r}, v{SR+r}")
    a("s_nop 0")
    for r in range(0, 32, 2):
        a(f"v_cvt_pk_bf16_f32 v{PR+r//2}, v{SR+r}, v{SR+r+1}")
    WDR, WOR = 16, 32
    a(f"""
    v_lshlrev_b32 v12, 13, v3
    v_lshl_add_u32 v12, v4, 4, v12        ; g4*4*2048 + c16*16
    s_lshl_b32 s64, s3, 15                ; w*16 rows * 2048
    s_lshl_b32 s65, s{sCBO}, 8
    s_add_u32 s64, s64, s65
    s_cmp_eq_u32 s{sHASWD}, 0
    s_cbranch_scc1 L_NOWDL
    s_lshr_b32 s66, s2, 3
    s_sub_u32 s66, s66, 4                 ; rb
    v_lshrrev_b32 v13, 2, v4              ; split
    v_mul_u32_u24 v13, 28672, v13
    v_bfe_u32 v14, v4, 1, 1               ; mat
    v_mul_u32_u24 v14, 114688, v14
    v_add_u32 v13, v13, v14
    v_and_b32 v14, 1, v4
    v_lshl_add_u32 v13, v14, 4, v13
    v_lshl_add_u32 v13, v3, 5, v13
    s_lshl_b32 s67, s66, 10
    s_lshl_b32 s68, s3, 7
    s_add_u32 s67, s67, s68
    s_add_u32 s67, s67, {GP}
    """)
    a.vmem(f"buffer_load_dwordx4 v[48:51], v13, s[{sWS}:{sWS+3}], s67 offen sc1", "gup", optional=True)
    a(f"""
    s_lshl_b32 s68, s66, 18
    s_add_u32 s68, s68, s64
    s_add_u32 s69, s68, 4096
    """)
    for i in range(4):
        a.vmem(f"buffer_load_dwordx4 v[{WDR+4*i}:{WDR+4*i+3}], v12, s[{sWD}:{sWD+3}], s{68+(i>>1)} offen offset:{(i&1)*2048}{NT}", "wd", optional=True)
    a.label("L_NOWDL")
    a(f"""
    s_lshl_b32 s68, s{sH}, 18
    s_add_u32 s68, s68, s64
    s_add_u32 s69, s68, 4096
    """)
    for i in range(4):
        a.vmem(f"buffer_load_dwordx4 v[{WOR+4*i}:{WOR+4*i+3}], v12, s[{sWO}:{sWO+3}], s{68+(i>>1)} offen offset:{(i&1)*2048}{NT}", "wo")
    for r in range(16):
        a(f"v_lshlrev_b32 v10, 16, v{PR+r}")
        a(f"v_and_b32 v11, 0xffff0000, v{PR+r}")
        a(f"v_add_f32 v9, v9, v10")
        a(f"v_add_f32 v9, v9, v11")
    a("""
    v_mov_b32 v10, v9
    s_nop 1
    v_permlane16_swap_b32 v9, v10
    v_add_f32 v9, v9, v10
    v_mov_b32 v10, v9
    s_nop 1
    v_permlane32_swap_b32 v9, v10
    v_add_f32 v9, v9, v10
    """)
    tb = 0
    for G in range(4):
        vb = (VR0 + G * 32) if G < 2 else (VR1 + (G - 2) * 32)
        a.wait_for(f"v{G}")
        for j in range(4):
            T = TR + tb * 8
            tb ^= 1
            for p in range(4):
                ra = vb + (2 * p) * 4 + j
                rb = vb + (2 * p + 1) * 4 + j
                a(f"v_perm_b32 v{T+p}, v{rb}, v{ra}, s{sPA}")
                a(f"v_perm_b32 v{T+4+p}, v{rb}, v{ra}, s{sPB}")
            a("s_nop 1")
            for h in range(2):
                e = 2 * j + h
                a(f"v_mfma_f32_16x16x32_bf16 v[{OR_+4*e}:{OR_+4*e+3}], v[{T+4*h}:{T+4*h+3}], v[{PR+4*G}:{PR+4*G+3}], v[{OR_+4*e}:{OR_+4*e+3}]")
    prof_at(5, True)
    a(f"""
    v_mul_u32_u24 v10, {WSZ}, v2
    v_mul_u32_u24 v11, {HS}, v4
    v_add_u32 v10, v10, v11
    v_lshl_add_u32 v10, v3, 7, v10      ; + g4*128
    v_add_u32 v10, {LO}, v10
    v_lshlrev_b32 v11, 7, v2
    v_lshl_add_u32 v11, v4, 3, v11      ; w*128 + c*8
    v_cmp_gt_u32 vcc, 8, v4
    s_and_saveexec_b64 s[{sEX}:{sEX+1}], vcc
    ds_write_b64 v11, v[8:9] offset:{LM}
    s_nop 7
    """)
    for r in range(4):
        for e in range(0, 8, 2):
            a(f"ds_write2_b32 v10, v{OR_+4*e+r}, v{OR_+4*(e+1)+r} offset0:{r*8+e} offset1:{r*8+e+1}")
    CB = 64
    a(f"""
    s_mov_b64 exec, s[{sEX}:{sEX+1}]
    v_lshlrev_b32 v10, 3, v2            ; hh*8
    v_mul_u32_u24 v11, {HS}, v2
    v_lshl_add_u32 v11, v1, 3, v11
    s_waitcnt lgkmcnt(0)
    s_barrier
    """)
    for w in range(8):
        a(f"ds_read_b64 v[{CB+2*w}:{CB+1+2*w}], v10 offset:{LM + w*128}")
    for w in range(8):
        a(f"ds_read_b64 v[{CB+16+2*w}:{CB+17+2*w}], v11 offset:{LO + w*WSZ}")
    a(f"""
    s_lshl_b32 s64, s2, 12              ; wg*8*512
    s_add_u32 s64, s64, {AO}
    v_lshlrev_b32 v10, 9, v2
    v_lshl_add_u32 v10, v1, 3, v10
    s_lshl_b32 s65, s{sG}, 12           ; g*8*64*8
    s_lshl_b32 s66, s{sJ}, 3
    s_add_u32 s65, s65, s66
    s_add_u32 s65, s65, {AML}
    v_lshlrev_b32 v11, 9, v2            ; hh*64*8
    s_waitcnt lgkmcnt(0)
    v_max3_f32 v8, v{CB}, v{CB+2}, v{CB+4}
    v_max3_f32 v8, v8, v{CB+6}, v{CB+8}
    v_max3_f32 v8, v8, v{CB+10}, v{CB+12}
    v_max_f32 v8, v8, v{CB+14}
    """)
    for w in range(8):
        a(f"v_sub_f32 v{CB+2*w}, v{CB+2*w}, v8")
    for w in range(8):
        a(f"v_exp_f32 v{CB+2*w}, v{CB+2*w}")
    a(f"""
    s_nop 0
    v_mul_f32 v9, v{CB}, v{CB+1}
    v_mul_f32 v{CB+32}, v{CB}, v{CB+16}
    v_mul_f32 v{CB+33}, v{CB}, v{CB+17}
    """)
    for w in range(1, 8):
        a(f"v_fmac_f32 v9, v{CB+2*w}, v{CB+1+2*w}")
        a(f"v_fmac_f32 v{CB+32}, v{CB+2*w}, v{CB+16+2*w}")
        a(f"v_fmac_f32 v{CB+33}, v{CB+2*w}, v{CB+17+2*w}")
    a(f"""
    v_min_u32 v{CB+32}, -2, v{CB+32}
    v_min_u32 v{CB+33}, -2, v{CB+33}
    v_min_u32 v8, -2, v8
    v_min_u32 v9, -2, v9
    buffer_store_dwordx2 v[{CB+32}:{CB+33}], v10, s[{sWS}:{sWS+3}], s64 offen sc1
    s_mov_b64 exec, 1
    buffer_store_dwordx2 v[8:9], v11, s[{sWS}:{sWS+3}], s65 offen sc1
    s_mov_b64 exec, -1
    """)
    prof_at(6)
    a(f"""
    v_and_b32 v10, 1, v3
    v_lshlrev_b32 v10, 1, v10
    v_lshrrev_b32 v11, 1, v3
    v_or_b32 v10, v10, v11             ; sigma(g4)
    v_lshl_add_u32 v10, v4, 3, v10
    v_lshlrev_b32 v10, 2, v10
    v_lshl_add_u32 v10, v2, 9, v10
    v_add_u32 v10, {LOUT}, v10         ; persistent: LDS out addr
    """)
    a(f"""
    s_cmp_eq_u32 s{sHASWD}, 0
    s_cbranch_scc1 L_NOWD
    s_mov_b32 s{sIT}, 0
    s_waitcnt vmcnt(6)
    """)
    a.label("L_POLLH")
    a(f"""
    v_xor_b32 v64, s{sTAG}, v49
    v_xor_b32 v65, s{sTAG}, v51
    v_or_b32 v64, v64, v65
    v_cmp_ne_u32 vcc, 0, v64
    s_cbranch_vccz L_POLLH_DONE
    s_add_u32 s{sIT}, s{sIT}, 1
    s_cmp_lt_u32 s{sIT}, {cfg.limit}
    s_cbranch_scc0 L_POLLH_DONE
    s_sleep {cfg.sleep}
    buffer_load_dwordx4 v[48:51], v13, s[{sWS}:{sWS+3}], s67 offen sc1
    s_waitcnt vmcnt(0)
    s_branch L_POLLH
    """)
    a.label("L_POLLH_DONE")
    a("v_mov_b32 v14, v48")
    a("v_mov_b32 v15, v50")
    for r in (4, 8):
        a("s_nop 1")
        dpp(a, "v_add_f32", 14, 14, 14, f"row_ror:{r}")
        dpp(a, "v_add_f32", 15, 15, 15, f"row_ror:{r}")
    a(f"""
    v_cvt_pk_bf16_f32 v14, v14, v15
    s_nop 1
    v_mov_b32_dpp v15, v14 quad_perm:[2,3,0,1] row_mask:0xf bank_mask:0xf
    v_lshlrev_b32 v64, 16, v14          ; gate0
    v_and_b32 v65, 0xffff0000, v14      ; gate1
    v_mul_f32 v66, {f32(-LOG2E)}, v64
    v_mul_f32 v67, {f32(-LOG2E)}, v65
    v_exp_f32 v66, v66
    v_exp_f32 v67, v67
    s_nop 0
    v_add_f32 v66, 1.0, v66
    v_add_f32 v67, 1.0, v67
    v_rcp_f32 v66, v66
    v_rcp_f32 v67, v67
    s_nop 0
    v_mul_f32 v64, v64, v66
    v_mul_f32 v65, v65, v67
    v_cvt_pk_bf16_f32 v64, v64, v65
    v_lshlrev_b32 v65, 16, v64
    v_and_b32 v64, 0xffff0000, v64
    v_lshlrev_b32 v66, 16, v15          ; up0
    v_and_b32 v67, 0xffff0000, v15      ; up1
    v_mul_f32 v65, v65, v66
    v_mul_f32 v64, v64, v67
    v_cvt_pk_bf16_f32 v64, v65, v64
    s_nop 1
    v_mov_b32_dpp v14, v64 quad_perm:[0,0,0,0] row_mask:0xf bank_mask:0xf
    v_mov_b32_dpp v15, v64 quad_perm:[1,1,1,1] row_mask:0xf bank_mask:0xf
    s_waitcnt vmcnt(6)
    """)
    gemv_rows(a, 4, WDR, 14, 64, 72, 73)
    reduce8(a, 64)
    a(f"""
    v_add_u32 v11, 4096, v10
    ds_write2_b32 v11, v64, v68 offset0:0 offset1:4
    """)
    a.label("L_NOWD")
    a(f"""
    v_lshlrev_b32 v11, 5, v4              ; c16*4 splits * 8 B
    s_lshl_b32 s64, s{sH}, 9
    s_add_u32 s64, s64, {AML}
    s_mov_b32 s{sIT}, 0
    """)
    a.label("L_POLLM")
    a(f"""
    buffer_load_dwordx4 v[64:67], v11, s[{sWS}:{sWS+3}], s64 offen sc1
    buffer_load_dwordx4 v[68:71], v11, s[{sWS}:{sWS+3}], s64 offen offset:16 sc1
    s_waitcnt vmcnt(0)
    v_max3_u32 v72, v64, v65, v66
    v_max3_u32 v72, v72, v67, v68
    v_max3_u32 v72, v72, v69, v70
    v_max_u32 v72, v72, v71
    v_cmp_eq_u32 vcc, -1, v72
    s_cbranch_vccz L_POLLM_DONE
    s_sleep {cfg.sleep}
    s_add_u32 s{sIT}, s{sIT}, 1
    s_cmp_lt_u32 s{sIT}, {cfg.limit}
    s_cbranch_scc1 L_POLLM
    """)
    a.label("L_POLLM_DONE")
    a(f"""
    v_lshlrev_b32 v11, 14, v4
    v_lshl_add_u32 v11, v3, 4, v11
    s_lshl_b32 s64, s{sG}, 18
    s_and_b32 s65, s{sH}, 7
    s_lshl_b32 s65, s65, 9
    s_add_u32 s64, s64, s65
    s_lshl_b32 s65, s3, 6
    s_add_u32 s64, s64, s65
    s_add_u32 s64, s64, {AO}
    s_add_u32 s65, s64, 4096
    s_add_u32 s66, s64, 8192
    s_add_u32 s67, s64, 12288
    s_mov_b32 s{sIT}, 0
    """)
    a.label("L_POLLO")
    for k in range(4):
        a(f"buffer_load_dwordx4 v[{80+4*k}:{83+4*k}], v11, s[{sWS}:{sWS+3}], s{64+k} offen sc1")
    a(f"""
    v_max3_f32 v96, v64, v66, v68
    v_max_f32 v96, v96, v70
    """)
    row_allreduce(a, [96], "v_max_f32")
    a(f"""
    v_sub_f32 v97, v64, v96
    v_sub_f32 v98, v66, v96
    v_sub_f32 v99, v68, v96
    v_sub_f32 v100, v70, v96
    v_exp_f32 v97, v97
    v_exp_f32 v98, v98
    v_exp_f32 v99, v99
    v_exp_f32 v100, v100
    s_nop 0
    v_mul_f32 v101, v97, v65
    v_fmac_f32 v101, v98, v67
    v_fmac_f32 v101, v99, v69
    v_fmac_f32 v101, v100, v71
    """)
    row_allreduce(a, [101], "v_add_f32")
    a(f"""
    v_rcp_f32 v101, v101
    s_waitcnt vmcnt(0)
    v_max3_u32 v72, v80, v81, v82
    v_max3_u32 v72, v72, v83, v84
    v_max3_u32 v72, v72, v85, v86
    v_max3_u32 v72, v72, v87, v88
    v_max3_u32 v72, v72, v89, v90
    v_max3_u32 v72, v72, v91, v92
    v_max3_u32 v72, v72, v93, v94
    v_max_u32 v72, v72, v95
    v_cmp_eq_u32 vcc, -1, v72
    s_cbranch_vccz L_POLLO_DONE
    s_sleep {cfg.sleep}
    s_add_u32 s{sIT}, s{sIT}, 1
    s_cmp_lt_u32 s{sIT}, {cfg.limit}
    s_cbranch_scc1 L_POLLO
    """)
    a.label("L_POLLO_DONE")
    prof_at(7)
    for d in range(4):
        a(f"v_mul_f32 v{102+d}, v97, v{80+d}")
    for k in range(1, 4):
        for d in range(4):
            a(f"v_fmac_f32 v{102+d}, v{97+k}, v{80+4*k+d}")
    row_allreduce(a, [102, 103, 104, 105], "v_add_f32")
    a(f"""
    v_mul_f32 v102, v102, v101
    v_mul_f32 v103, v103, v101
    v_mul_f32 v104, v104, v101
    v_mul_f32 v105, v105, v101
    v_cvt_pk_bf16_f32 v14, v102, v103
    v_cvt_pk_bf16_f32 v15, v104, v105
    """)
    gemv_rows(a, 4, WOR, 14, 64, 72, 73)
    reduce8(a, 64)
    a(f"""
    ds_write2_b32 v10, v64, v68 offset0:0 offset1:4
    s_waitcnt lgkmcnt(0)
    s_barrier
    s_cmp_ge_u32 s3, 4
    s_cbranch_scc1 L_OPDONE
    s_lshr_b32 s64, s3, 1
    s_cmp_gt_u32 s64, s{sHASWD}
    s_cbranch_scc1 L_OPDONE
    v_and_b32 v11, 127, v0
    v_lshlrev_b32 v11, 2, v11
    s_lshl_b32 s65, s64, 12
    s_add_u32 s65, s65, {LOUT}
    v_add_u32 v12, s65, v11
    ds_read2st64_b32 v[64:65], v12 offset0:0 offset1:2
    ds_read2st64_b32 v[66:67], v12 offset0:4 offset1:6
    ds_read2st64_b32 v[68:69], v12 offset0:8 offset1:10
    ds_read2st64_b32 v[70:71], v12 offset0:12 offset1:14
    s_lshr_b32 s65, s2, 3
    s_add_u32 s65, s65, 28
    s_cmp_eq_u32 s64, 0
    s_cselect_b32 s65, s{sH}, s65
    s_lshl_b32 s65, s65, 13
    s_lshl_b32 s66, s{sCBO}, 10
    s_add_u32 s65, s65, s66
    s_add_u32 s65, s65, {OP}
    v_lshlrev_b32 v11, 1, v11
    s_waitcnt lgkmcnt(0)
    v_add_f32 v64, v64, v65
    v_add_f32 v66, v66, v67
    v_add_f32 v68, v68, v69
    v_add_f32 v70, v70, v71
    v_add_f32 v64, v64, v66
    v_add_f32 v68, v68, v70
    v_add_f32 v64, v64, v68
    v_mov_b32 v65, s{sTAG}
    buffer_store_dwordx2 v[64:65], v11, s[{sWS}:{sWS+3}], s65 offen sc1
    """)
    a.label("L_OPDONE")
    prof_at(8)
    a(f"""
    s_cmp_ge_u32 s2, 8
    s_cbranch_scc1 L_FIN_END
    """)
    a(f"""
    v_lshlrev_b32 v11, 5, v1
    buffer_load_dwordx4 v[16:19], v11, s[{sX}:{sX+3}], 0 offen
    buffer_load_dwordx4 v[20:23], v11, s[{sX}:{sX+3}], 0 offen offset:16
    buffer_load_dwordx4 v[24:27], v11, s[{sWR}:{sWR+3}], 0 offen
    buffer_load_dwordx4 v[28:31], v11, s[{sWR}:{sWR+3}], 0 offen offset:16
    buffer_load_dwordx4 v[32:35], v11, s[{sGW}:{sGW+3}], 0 offen
    buffer_load_dwordx4 v[36:39], v11, s[{sGW}:{sGW+3}], 0 offen offset:16
    v_and_b32 v12, 3, v1
    v_lshlrev_b32 v12, 3, v12
    s_lshl_b32 s64, s2, 8
    s_lshl_b32 s65, s3, 5
    s_add_u32 s64, s64, s65               ; (cbo*128 + w*16)*2
    buffer_load_dwordx2 v[40:41], v12, s[{sX}:{sX+3}], s64 offen
    v_mov_b32 v64, 0
    v_mov_b32 v65, 0
    s_waitcnt vmcnt(0)
    """)
    for d in range(8):
        a(f"v_dot2c_f32_bf16 v64, v{16+d}, v{24+d}")
    for d in range(8):
        a(f"""
        v_lshlrev_b32 v66, 16, v{16+d}
        v_and_b32 v67, 0xffff0000, v{16+d}
        v_lshlrev_b32 v68, 16, v{32+d}
        v_and_b32 v69, 0xffff0000, v{32+d}
        v_mul_f32 v66, v66, v68
        v_mul_f32 v67, v67, v69
        v_cvt_pk_bf16_f32 v66, v66, v67
        v_lshlrev_b32 v67, 16, v66
        v_and_b32 v66, 0xffff0000, v66
        v_add_f32 v65, v65, v66
        v_add_f32 v65, v65, v67
        """)
    wave_allreduce(a, 64, 66, "v_add_f32")
    wave_allreduce(a, 65, 66, "v_add_f32")
    a(f"""
    v_cvt_pk_bf16_f32 v64, v64, v65
    v_and_b32 v65, 0xffff0000, v64
    v_lshlrev_b32 v64, 16, v64
    v_mul_f32 v64, {f32(-LOG2E)}, v64
    v_mul_f32 v65, {f32(-LOG2E)}, v65
    v_exp_f32 v64, v64
    v_exp_f32 v65, v65
    s_nop 0
    v_add_f32 v64, 1.0, v64
    v_add_f32 v65, 1.0, v65
    v_rcp_f32 v64, v64
    v_rcp_f32 v65, v65
    s_nop 0
    v_cvt_pk_bf16_f32 v64, v64, v65
    v_and_b32 v44, 0xffff0000, v64     ; g
    v_lshlrev_b32 v46, 16, v64         ; sr
    v_sub_f32 v45, 1.0, v44
    v_cvt_pk_bf16_f32 v45, v45, v45
    v_lshlrev_b32 v45, 16, v45         ; 1-g
    v_lshrrev_b32 v11, 2, v1
    v_lshlrev_b32 v11, 13, v11
    v_lshl_add_u32 v11, v12, 2, v11     ; p*8192 + cq*32
    s_lshl_b32 s64, s2, 10
    s_lshl_b32 s65, s3, 7
    s_add_u32 s64, s64, s65
    s_add_u32 s64, s64, {OP}
    s_add_u32 s65, s64, {16*8192}
    s_add_u32 s66, s64, {32*8192}
    s_add_u32 s67, s64, {48*8192}
    v_mov_b32 v120, 0
    v_mov_b32 v121, s{sTAG}
    v_mov_b32 v122, 0
    v_mov_b32 v123, s{sTAG}
    v_mov_b32 v124, 0
    v_mov_b32 v125, s{sTAG}
    v_mov_b32 v126, 0
    v_mov_b32 v127, s{sTAG}
    s_mov_b32 s{sIT}, 0
    s_mov_b32 s68, -1
    s_mov_b32 s69, 0xffff
    """)
    a.label("L_POLLF")
    a(f"""
    buffer_load_dwordx4 v[96:99], v11, s[{sWS}:{sWS+3}], s64 offen sc1
    buffer_load_dwordx4 v[100:103], v11, s[{sWS}:{sWS+3}], s64 offen offset:16 sc1
    buffer_load_dwordx4 v[104:107], v11, s[{sWS}:{sWS+3}], s65 offen sc1
    buffer_load_dwordx4 v[108:111], v11, s[{sWS}:{sWS+3}], s65 offen offset:16 sc1
    buffer_load_dwordx4 v[112:115], v11, s[{sWS}:{sWS+3}], s66 offen sc1
    buffer_load_dwordx4 v[116:119], v11, s[{sWS}:{sWS+3}], s66 offen offset:16 sc1
    s_mov_b64 exec, s[68:69]
    buffer_load_dwordx4 v[120:123], v11, s[{sWS}:{sWS+3}], s67 offen sc1
    buffer_load_dwordx4 v[124:127], v11, s[{sWS}:{sWS+3}], s67 offen offset:16 sc1
    s_mov_b64 exec, -1
    v_mov_b32 v80, 0
    s_waitcnt vmcnt(0)
    """)
    for r in range(96, 128, 4):
        a(f"v_xor_b32 v81, s{sTAG}, v{r+1}")
        a(f"v_xor_b32 v82, s{sTAG}, v{r+3}")
        a(f"v_or3_b32 v80, v80, v81, v82")
    a(f"""
    v_cmp_ne_u32 vcc, 0, v80
    s_cbranch_vccz L_POLLF_DONE
    s_sleep {cfg.sleep}
    s_add_u32 s{sIT}, s{sIT}, 1
    s_cmp_lt_u32 s{sIT}, {cfg.limit}
    s_cbranch_scc1 L_POLLF
    """)
    a.label("L_POLLF_DONE")
    for d in range(4):
        a(f"v_add_f32 v{64+d}, v{96+2*d}, v{104+2*d}")
        a(f"v_add_f32 v{72+d}, v{112+2*d}, v{120+2*d}")
    regs = [64, 65, 66, 67, 72, 73, 74, 75]
    for r in (4, 8):
        a("s_nop 1")
        for v in regs:
            dpp(a, "v_add_f32", v, v, v, f"row_ror:{r}")
    for sw in ("v_permlane16_swap_b32", "v_permlane32_swap_b32"):
        for i, v in enumerate(regs):
            a(f"v_mov_b32 v{80+i}, v{v}")
        a("s_nop 1")
        for i, v in enumerate(regs):
            a(f"{sw} v{v}, v{80+i}")
        for i, v in enumerate(regs):
            a(f"v_add_f32 v{v}, v{v}, v{80+i}")
    for d in range(4):
        xr = 40 + d // 2
        xe = f"v_lshlrev_b32 v84, 16, v{xr}" if d % 2 == 0 else f"v_and_b32 v84, 0xffff0000, v{xr}"
        a(f"""
        v_cvt_pk_bf16_f32 v80, v{64+d}, v{72+d}
        v_and_b32 v81, 0xffff0000, v80      ; y
        v_lshlrev_b32 v80, 16, v80          ; a
        v_mul_f32 v81, v81, v46             ; y*sr
        v_mul_f32 v80, v80, v44             ; g*a
        v_cvt_pk_bf16_f32 v80, v80, v81
        v_and_b32 v81, 0xffff0000, v80
        v_lshlrev_b32 v80, 16, v80
        {xe}
        v_add_f32 v81, v81, v84             ; b
        v_cvt_pk_bf16_f32 v81, v81, v81
        v_lshlrev_b32 v81, 16, v81
        v_mul_f32 v81, v81, v45             ; (1-g)*b
        v_cvt_pk_bf16_f32 v81, v81, v81
        v_lshlrev_b32 v81, 16, v81
        v_add_f32 v{64+d}, v80, v81
        """)
    a(f"""
    v_cvt_pk_bf16_f32 v64, v64, v65
    v_cvt_pk_bf16_f32 v65, v66, v67
    s_lshl_b32 s64, s2, 8
    s_lshl_b32 s65, s3, 5
    s_add_u32 s64, s64, s65
    s_mov_b64 exec, 0xf
    buffer_store_dwordx2 v[64:65], v12, s[{sOUT}:{sOUT+3}], s64 offen
    s_mov_b64 exec, -1
    """)
    a.label("L_FIN_END")
    if cfg.prof:
        prof_at(9, cfg.dbgat == 2)
        a(f"""
        s_cmp_ge_u32 s3, 2
        s_cbranch_scc1 L_END
        s_lshl_b32 s64, s2, 7
        s_lshl_b32 s65, s3, 6
        s_add_u32 s64, s64, s65
        s_add_u32 s64, s64, {PROFB}
        """)
        for i in range(10):
            a(f"v_mov_b32 v{64+i}, s{PT0+i}")
        a(f"""
        s_mov_b64 exec, 1
        buffer_store_dwordx4 v[64:67], off, s[{sWS}:{sWS+3}], s64
        buffer_store_dwordx4 v[68:71], off, s[{sWS}:{sWS+3}], s64 offset:16
        buffer_store_dwordx2 v[72:73], off, s[{sWS}:{sWS+3}], s64 offset:32
        """)
    a.label("L_END")
    a("s_endpgm")

    hdr = f"""; generated: single persistent kernel (q gemv + exchange, split-K attention, FFN, combine, final)
; @launch grid=(256,1,1) block=(512,1,1) lds={LDS_TOTAL}
.amdgcn_target "amdgcn-amd-amdhsa--gfx950"
.text
"""
    tail = f""".section .rodata,"a"
.p2align 6
.amdhsa_kernel {kname}
  .amdhsa_next_free_vgpr 256
  .amdhsa_next_free_sgpr 102
  .amdhsa_accum_offset 256
  .amdhsa_group_segment_fixed_size 0
  .amdhsa_kernarg_size 112
  .amdhsa_user_sgpr_count 2
  .amdhsa_user_sgpr_kernarg_segment_ptr 1
  .amdhsa_system_sgpr_workgroup_id_x 1
.end_amdhsa_kernel
"""
    return hdr + a.text() + tail

if __name__ == "__main__":
    cfg = Cfg()
    out = f"cdna_kernels/{NAME}.s"
    for arg in sys.argv[1:]:
        if "=" in arg:
            k, v = arg.split("=")
            if k == "nt":
                cfg.nt = " nt" if v == "1" else ""
            else:
                setattr(cfg, k, int(v))
        else:
            out = arg
    open(out, "w").write(build(cfg))
    print("wrote", out)
```

```python
import sys, struct

NAME = "gated_mix__gqa_block_cached__moe_arch_mod__decode"

def f32(x):
    return "0x%08x" % struct.unpack("<I", struct.pack("<f", x))[0]

QP = 0x000000
GP = 0x020000
AML = 0x040000
AO = 0x100000
OP = 0x200000
FINB = 288 * 128
PROFB = 0x380000
WS_SIZE = 268435456

LOG2E = 1.4426950408889634
CSC = LOG2E * (128 ** -0.5)

LQP = 0
LGP = 2048
LDP = 4096
LQ = 8192
QS = 272
LMX = 10368
LL = 10624
LOV = 10880
LPRE = 10944
LFL = 10960
LF = 11264
LO = 13312
HS = 544
WSZ = 8 * HS
LDS_TOTAL = LO + 8 * WSZ
F_CQ, F_CG, F_TAG, F_CQ2, F_CM, F_CO, F_CD, F_CF = [LFL + 4 * i for i in range(8)]

class Cfg:
    pace = 2
    prof = 0
    nt = " nt"
    limit = 200000
    sleep = 1
    burst = 2
    qpoll = 20
    qchk = 3
    extra = 2
    hooks = "0,2,4,8"
    od = 0
    xr = 0

class A:
    def __init__(self):
        self.l = []
        self.vm = []
    def __call__(self, s):
        for line in s.strip("\n").split("\n"):
            line = line.strip()
            if line:
                self.l.append("    " + line)
    def label(self, s):
        self.l.append(s + ":")
    def raw(self, s):
        self.l.append(s)
    def text(self):
        return "\n".join(self.l) + "\n"
    def vmem(self, s, tag, optional=False):
        self(s)
        self.vm.append((tag, optional))
    def cnt_after(self, tag):
        idx = max(i for i, (t, o) in enumerate(self.vm) if t == tag)
        return sum(1 for (t, o) in self.vm[idx + 1:] if not o)
    def count(self, tag):
        return sum(1 for t, o in self.vm if t == tag)
    def wait_for(self, tag, extra=""):
        n = self.cnt_after(tag)
        assert n <= 63
        self(f"s_waitcnt vmcnt({n}){extra}")

def srd(a, sb, size):
    a(f"""
    s_and_b32 s{sb+1}, s{sb+1}, 0xffff
    s_mov_b32 s{sb+2}, {size}
    s_mov_b32 s{sb+3}, 0x00020000
    """)

def dpp(a, op, d, s0, s1, ctrl, bank="0xf"):
    a(f"{op}_dpp v{d}, v{s0}, v{s1} {ctrl} row_mask:0xf bank_mask:{bank}")

def row_allreduce(a, regs, op, steps=(8, 4, 2, 1)):
    for r in steps:
        a("s_nop 1")
        for v in regs:
            dpp(a, op, v, v, v, f"row_ror:{r}")

def cross_rows(a, regs, tmp, op):
    for sw in ("v_permlane16_swap_b32", "v_permlane32_swap_b32"):
        for i, v in enumerate(regs):
            a(f"v_mov_b32 v{tmp+i}, v{v}")
        a("s_nop 1")
        for i, v in enumerate(regs):
            a(f"{sw} v{v}, v{tmp+i}")
        for i, v in enumerate(regs):
            a(f"{op} v{v}, v{v}, v{tmp+i}")

def reduce8(a, acc):
    a("s_nop 1")
    for b in (0, 2, 4, 6):
        a(f"v_permlane32_swap_b32 v{acc+b}, v{acc+b+1}")
    for b in (0, 2, 4, 6):
        a(f"v_add_f32 v{acc+b}, v{acc+b}, v{acc+b+1}")
    a("s_nop 1")
    a(f"v_permlane16_swap_b32 v{acc}, v{acc+2}")
    a(f"v_permlane16_swap_b32 v{acc+4}, v{acc+6}")
    a(f"v_add_f32 v{acc}, v{acc}, v{acc+2}")
    a(f"v_add_f32 v{acc+4}, v{acc+4}, v{acc+6}")

def gemv_rows(a, nrows, wbase, xp, acc, t0, t1, slot=None, first=0):
    if first == 0:
        for r in range(8):
            a(f"v_mov_b32 v{acc+r}, 0")
    for i in range(first, nrows):
        xr = xp + i // 2
        if i % 2 == 0:
            a(f"v_and_b32 v{t0}, 0xffff, v{xr}")
            a(f"v_lshlrev_b32 v{t1}, 16, v{xr}")
        else:
            a(f"v_lshrrev_b32 v{t0}, 16, v{xr}")
            a(f"v_and_b32 v{t1}, 0xffff0000, v{xr}")
        for d in range(4):
            a(f"v_dot2c_f32_bf16 v{acc+2*d}, v{wbase+4*i+d}, v{t0}")
            a(f"v_dot2c_f32_bf16 v{acc+2*d+1}, v{wbase+4*i+d}, v{t1}")
        if slot is not None and i % 2 == 1:
            slot()

def pk_add(a, d, s0, s1):
    a(f"v_pk_add_f32 v[{d}:{d+1}], v[{s0}:{s0+1}], v[{s1}:{s1+1}]")

def tree8(a, base, stride, n):
    for st in (1, 2, 4):
        for w in range(0, 8, 2 * st):
            for k in range(0, n, 2):
                pk_add(a, base + w * stride + k, base + w * stride + k, base + (w + st) * stride + k)

SR = 16
DR = 32
QR = 48
VR0, KR = 64, 128
VR1, OR_, TR, PR = 128, 192, 224, 240
WDR, WOR = 16, 32
GR, XG = 64, 96
TB = 12
HR = 62
vZ = 57
sK, sV, sWS, sX, sWQ, sGU, sDBG, sOUT, sWR, sGW = 4, 8, 12, 16, 20, 24, 28, 32, 36, 40
sWO, sWD = 84, 88
sG, sJ = 44, 45
sPUB = 46
sTAG = 47
sT = 48
sWQS, sXQS, sGUS, sGUX = 56, 57, 58, 59
sWOS, sWDS = 60, 62
sPA, sPB = 72, 73
sMA = 74
sIT = 76
sMSK = 77
sMB = 78
sPOL = 80
sONE = 81
sQPL, sHPL = 82, 83
sQPUB, sGPUB = 92, 93
sMC = 94
sCAND = 96
sU, sISQ, sHF, sHPM = 98, 99, 100, 101

def build(cfg):
    a = A()
    NT = cfg.nt
    P = cfg.pace
    kname = NAME + "_kernel"
    uid = [0]
    def lab(p):
        uid[0] += 1
        return f"L_{p}{uid[0]}"
    def prof_at(i):
        if cfg.prof:
            a(f"""
            s_memrealtime s[70:71]
            s_waitcnt lgkmcnt(0)
            v_writelane_b32 v0, s70, {i}
            """)

    a.raw(f".globl {kname}")
    a.raw(".p2align 8")
    a.raw(f".type {kname},@function")
    a.label(kname)
    a(f"""
    s_cmp_ge_u32 s2, 256
    s_cbranch_scc1 L_END
    s_mov_b32 s97, s2
    s_xor_b32 s2, s2, {cfg.xr}
    s_load_dwordx2 s[{sX}:{sX+1}], s[0:1], 0
    s_load_dwordx2 s[{sWQ}:{sWQ+1}], s[0:1], 24
    s_load_dwordx2 s[{sDBG}:{sDBG+1}], s[0:1], 96
    s_load_dwordx2 s[{sGU}:{sGU+1}], s[0:1], 56
    s_load_dwordx2 s[68:69], s[0:1], 64
    s_load_dwordx2 s[{sK}:{sK+1}], s[0:1], 8
    s_load_dwordx2 s[{sV}:{sV+1}], s[0:1], 16
    s_load_dwordx2 s[{sWS}:{sWS+1}], s[0:1], 104
    s_load_dwordx2 s[{sWO}:{sWO+1}], s[0:1], 32
    s_load_dwordx2 s[{sWD}:{sWD+1}], s[0:1], 72
    s_load_dwordx2 s[{sOUT}:{sOUT+1}], s[0:1], 88
    s_load_dwordx2 s[{sWR}:{sWR+1}], s[0:1], 48
    s_load_dwordx2 s[{sGW}:{sGW+1}], s[0:1], 80
    s_memrealtime s[70:71]
    v_and_b32 v1, 63, v0
    v_lshrrev_b32 v2, 6, v0
    v_lshrrev_b32 v3, 4, v1       ; g4
    v_and_b32 v4, 15, v1          ; c16
    v_mov_b32 v0, 0
    v_readfirstlane_b32 s3, v2
    s_lshr_b32 s{sG}, s2, 6
    s_and_b32 s{sJ}, s2, 63
    v_bfe_u32 v5, v1, 2, 2
    v_lshlrev_b32 v5, 10, v5
    v_bfe_u32 v8, v1, 1, 1
    v_lshl_add_u32 v5, v8, 8, v5
    v_lshl_add_u32 v5, v3, 5, v5
    v_and_b32 v8, 1, v1
    v_lshl_add_u32 v5, v8, 4, v5
    v_lshlrev_b32 v6, 10, v3
    v_lshl_add_u32 v6, v4, 4, v6  ; V voffset
    s_lshl_b32 s{sT}, s2, 18
    s_lshl_b32 s64, s3, 12
    s_add_u32 s{sT}, s{sT}, s64
    """)
    for t in range(1, 8):
        a(f"s_add_u32 s{sT+t}, s{sT}, {t*32768}")
    a(f"""
    v_lshrrev_b32 v56, 3, v1            ; r8
    v_and_b32 v58, 7, v1                ; pc
    v_lshlrev_b32 v10, 15, v56
    v_lshl_add_u32 v10, v58, 4, v10
    v_lshlrev_b32 v11, 3, v56           ; x voffset
    v_mul_u32_u24 v60, 28672, v56
    v_lshl_add_u32 v60, v58, 4, v60
    s_bfe_u32 s{sIT}, s2, 0x30003
    s_bfe_u32 s64, s2, 0x10002
    s_lshl_b32 s64, s64, 3
    s_add_u32 s64, s64, s{sIT}          ; cbq
    s_and_b32 s65, s{sJ}, 3             ; ks
    s_lshl_b32 s66, s65, 8
    s_lshl_b32 s67, s3, 5
    s_add_u32 s66, s66, s67             ; row0
    s_lshl_b32 s{sXQS}, s66, 1
    s_lshl_b32 s{sWQS}, s66, 13
    s_lshl_b32 s67, s{sG}, 11
    s_add_u32 s{sWQS}, s{sWQS}, s67
    s_lshl_b32 s67, s64, 7
    s_add_u32 s{sWQS}, s{sWQS}, s67
    s_lshl_b32 s{sQPL}, s{sG}, 14       ; QP + G*16384
    s_lshr_b32 s67, s64, 1
    s_lshl_b32 s67, s67, 11
    s_add_u32 s{sQPUB}, s{sQPL}, s67
    s_lshl_b32 s67, s65, 9
    s_add_u32 s{sQPUB}, s{sQPUB}, s67
    s_and_b32 s67, s64, 1
    s_lshl_b32 s67, s67, 8
    s_add_u32 s{sQPUB}, s{sQPUB}, s67
    s_lshl_b32 s67, s3, 11
    s_add_u32 s{sQPL}, s{sQPL}, s67
    v_and_b32 v9, 1, v3
    v_lshlrev_b32 v9, 1, v9
    v_lshrrev_b32 v8, 1, v3
    v_or_b32 v9, v9, v8                 ; sigma(g4)
    v_bfe_u32 v8, v1, 3, 1
    v_lshl_add_u32 v9, v8, 2, v9
    v_lshl_add_u32 v9, v58, 3, v9
    v_lshlrev_b32 v9, 2, v9
    v_lshl_add_u32 v7, v2, 8, v9
    s_cmp_gt_u32 s{sIT}, 3
    s_cselect_b32 s65, 1, 0
    s_sub_u32 s65, s{sIT}, s65          ; r'
    s_lshl_b32 s65, s65, 3
    s_mul_i32 s{sU}, s{sG}, 56
    s_add_u32 s{sU}, s{sU}, s65
    s_and_b32 s65, s2, 7
    s_add_u32 s{sU}, s{sU}, s65         ; u
    s_lshl_b32 s66, s{sG}, 3
    s_add_u32 s66, s66, s65             ; f
    s_sub_u32 s67, s{sU}, 196
    s_cmp_ge_u32 s{sU}, 196
    s_cselect_b32 s{sISQ}, 1, 0
    s_add_u32 s65, s66, 28
    s_cmp_eq_u32 s{sIT}, 3
    s_cselect_b32 s67, s65, s67         ; qn
    s_cselect_b32 s{sISQ}, 1, s{sISQ}
    s_cselect_b32 s{sU}, s66, s{sU}     ; u or f
    s_cmp_lg_u32 s{sISQ}, 0
    s_cbranch_scc1 L_GQ
    s_lshr_b32 s64, s{sU}, 2            ; nb
    s_mul_i32 s65, s64, 37
    s_lshr_b32 s65, s65, 8              ; c7
    s_mul_i32 s66, s65, 7
    s_sub_u32 s64, s64, s66             ; rr
    s_cmp_ge_u32 s64, 3
    s_addc_u32 s64, s64, 0
    s_lshl_b32 s65, s65, 3
    s_add_u32 s64, s64, s65             ; cblock
    s_bfe_u32 s{sHF}, s{sU}, 0x10001    ; mat
    s_and_b32 s66, s{sU}, 1             ; part
    s_lshl_b32 s65, s66, 9
    s_lshl_b32 s67, s3, 6
    s_add_u32 s65, s65, s67             ; row0
    s_mov_b32 s67, 0
    s_branch L_GC
L_GQ:
    s_min_u32 s66, s67, 55
    s_lshr_b32 s64, s66, 3
    s_lshl_b32 s64, s64, 3
    s_add_u32 s64, s64, 3               ; cblock
    s_bfe_u32 s{sHF}, s66, 0x10002      ; mat
    s_and_b32 s66, s66, 3               ; part
    s_lshl_b32 s65, s66, 8
    s_lshl_b32 s{sHPM}, s3, 5
    s_add_u32 s65, s65, s{sHPM}         ; row0
L_GC:
    s_lshl_b32 s{sGUX}, s65, 1
    s_mul_i32 s{sGUS}, s65, 7168
    s_lshl_b32 s65, s64, 7
    s_add_u32 s{sGUS}, s{sGUS}, s65
    s_lshl_b32 s{sGPUB}, s64, 11
    s_lshl_b32 s65, s{sHF}, 10
    s_add_u32 s{sGPUB}, s{sGPUB}, s65
    s_lshl_b32 s65, s66, 8
    s_add_u32 s{sGPUB}, s{sGPUB}, s65
    s_lshl_b32 s65, s67, 8
    s_add_u32 s65, s65, {56*2048 - 56*256}
    s_cmp_ge_u32 s67, 56
    s_cselect_b32 s{sGPUB}, s65, s{sGPUB}
    s_add_u32 s{sGPUB}, s{sGPUB}, {GP}
    s_mov_b32 s{sPOL}, s{sHF}
    s_and_b32 s64, s{sU}, 0xf8
    s_add_u32 s64, s64, s3
    s_lshl_b32 s{sWDS}, s64, 15
    s_and_b32 s65, s{sU}, 7
    s_lshl_b32 s65, s65, 8
    s_add_u32 s{sWDS}, s{sWDS}, s65
    s_add_u32 s{sWDS+1}, s{sWDS}, 4096
    s_lshr_b32 s65, s64, 2
    s_lshl_b32 s{sHPL}, s65, 11
    s_and_b32 s65, s65, 7
    s_cmp_eq_u32 s65, 3
    s_cselect_b32 s{sHF}, 1.0, 0.5
    s_cselect_b32 s{sHPM}, 3, 1
    s_and_b32 s65, s64, 3
    s_lshl_b32 s65, s65, 6
    s_add_u32 s{sHPL}, s{sHPL}, s65
    s_add_u32 s{sHPL}, s{sHPL}, {GP}
    s_lshl_b32 s{sWOS}, s2, 15
    s_lshl_b32 s65, s3, 8
    s_add_u32 s{sWOS}, s{sWOS}, s65
    s_add_u32 s{sWOS+1}, s{sWOS}, 4096
    s_mov_b32 s{sMSK}, 0xffffff00
    s_mov_b32 s{sPA}, 0x05040100
    s_mov_b32 s{sPB}, 0x07060302
    s_mov_b32 s{sONE}, 0x3f803f80
    s_mov_b32 s{sPUB}, 0
    s_mov_b32 s{sTAG}, 0
    s_mov_b32 s{sCAND}, 0
    s_waitcnt lgkmcnt(0)
    s_cmp_eq_u32 s{sPOL}, 0
    s_cbranch_scc1 L_GSEL
    s_mov_b64 s[{sGU}:{sGU+1}], s[68:69]
    """)
    a.label("L_GSEL")
    srd(a, sX, 2048)
    srd(a, sWQ, 0x800000)
    srd(a, sDBG, 256)
    srd(a, sGU, 0x700000)
    srd(a, sK, 0x4000000)
    srd(a, sV, 0x4000000)
    srd(a, sWS, WS_SIZE)
    srd(a, sWO, 0x800000)
    srd(a, sWD, 0x700000)
    srd(a, sOUT, 2048)
    srd(a, sWR, 2048)
    srd(a, sGW, 2048)
    if cfg.prof:
        a("v_writelane_b32 v0, s70, 0")
    a(f"""
    s_cmp_lg_u32 s3, 0
    s_cbranch_scc1 L_NOT0
    s_cmp_eq_u32 s2, 0
    s_cbranch_scc0 L_W0_T1
    s_or_b32 s{sCAND}, s70, 1
    v_mov_b32 v58, s{sCAND}
    v_mov_b32 v59, 0
    s_mov_b64 exec, 1
    buffer_atomic_cmpswap v[58:59], off, s[{sDBG}:{sDBG+3}], 0 sc0 sc1
    s_mov_b64 exec, -1
    s_branch L_W0_T2
    """)
    a.label("L_W0_T1")
    a(f"buffer_load_dword v58, off, s[{sDBG}:{sDBG+3}], 0 sc1")
    a.label("L_W0_T2")
    a(f"""
    v_mov_b32 v56, 0
    v_lshlrev_b32 v57, 2, v1
    ds_write_b32 v57, v56 offset:{LOV}
    """)
    a.label("L_NOT0")
    a.vm = [("tag", True)]
    a.vmem(f"buffer_load_dwordx2 v[8:9], v11, s[{sX}:{sX+3}], s{sXQS} offen", "xq")
    for i in range(4):
        a.vmem(f"buffer_load_dwordx4 v[{16+4*i}:{19+4*i}], v10, s[{sWQ}:{sWQ+3}], s{sWQS} offen{NT}", "wq")
        if i < 3:
            a(f"s_add_u32 s{sWQS}, s{sWQS}, 8192")
    a(f"""
    s_cmp_eq_u32 s{sIT}, 3
    s_cbranch_scc1 L_LIGHT
    """)
    vm0 = list(a.vm)

    def body(heavy):
        a.vm = list(vm0)
        st = {"qk": False, "pv": -1, "sm": False}
        def ld_xg():
            a.vmem(f"buffer_load_dwordx2 v[{XG}:{XG+1}], v11, s[{sX}:{sX+3}], s{sGUX} offen", "g")
        def ld_g(i):
            a.vmem(f"buffer_load_dwordx4 v[{GR+4*i}:{GR+4*i+3}], v60, s[{sGU}:{sGU+3}], s{sGUS} offen{NT}", "g")
            if i < 3:
                a(f"s_add_u32 s{sGUS}, s{sGUS}, 7168")
        def ld_g2():
            L = lab("G2")
            a(f"""
            s_cmp_lg_u32 s{sISQ}, 0
            s_cbranch_scc1 {L}
            s_add_u32 s{sGUS}, s{sGUS}, {29*7168}
            """)
            a.vmem(f"buffer_load_dwordx2 v[{XG+2}:{XG+3}], v11, s[{sX}:{sX+3}], s{sGUX} offen offset:64", "g", optional=True)
            for i in range(4, 8):
                if i > 4:
                    a(f"s_waitcnt vmcnt({P})")
                a.vmem(f"buffer_load_dwordx4 v[{GR+4*i}:{GR+4*i+3}], v60, s[{sGU}:{sGU+3}], s{sGUS} offen{NT}", "g", optional=True)
                if i < 7:
                    a(f"s_add_u32 s{sGUS}, s{sGUS}, 7168")
            a.label(L)
        def ld_k(n):
            t, j = n >> 2, n & 3
            r = KR + n * 4
            a.vmem(f"buffer_load_dwordx4 v[{r}:{r+3}], v5, s[{sK}:{sK+3}], s{sT+t} offen offset:{(j&1)*128+(j>>1)*512}{NT}", f"k{t}")
            for h in khooks.get(n, []):
                h()
        def ld_v(G, i):
            if G >= 2:
                assert st["qk"]
            base = (VR0 + G * 32) if G < 2 else (VR1 + (G - 2) * 32)
            r = base + i * 4
            a.vmem(f"buffer_load_dwordx4 v[{r}:{r+3}], v6, s[{sV}:{sV+3}], s{sT+2*G+(i>>2)} offen offset:{(i&3)*256}{NT}", f"v{G}")
        def ld_wo(i):
            assert st["qk"]
            a.vmem(f"buffer_load_dwordx4 v[{WOR+4*i}:{WOR+4*i+3}], v2, s[{sWO}:{sWO+3}], s{sWOS+(i>>1)} offen offset:{(i&1)*2048}{NT}", "wo")
        def ld_wd(i):
            assert st["sm"]
            a.vmem(f"buffer_load_dwordx4 v[{WDR+4*i}:{WDR+4*i+3}], v2, s[{sWD}:{sWD+3}], s{sWDS+(i>>1)} offen offset:{(i&1)*2048}{NT}", "wd")
        stream = []
        def slot(n=1, paced=True):
            for _ in range(n):
                if stream:
                    fn, args = stream.pop(0)
                    if paced:
                        a(f"s_waitcnt vmcnt({P})")
                    fn(*args)
        def fill(tag, n):
            while stream and (a.count(tag) < n or a.cnt_after(tag) < P + 1):
                slot()
        def lds_count(flag, t0, t1, rtn=None):
            a(f"""
            v_mov_b32 v{t0}, 0
            v_mov_b32 v{t1}, 1
            s_waitcnt lgkmcnt(0)
            s_mov_b64 exec, 1
            """)
            if rtn is None:
                a(f"ds_add_u32 v{t0}, v{t1} offset:{flag}")
                a("s_mov_b64 exec, -1")
            else:
                a(f"""
                ds_add_rtn_u32 v{t1}, v{t0}, v{t1} offset:{flag}
                s_mov_b64 exec, -1
                s_waitcnt lgkmcnt(0)
                v_readfirstlane_b32 s{rtn}, v{t1}
                """)
        def lds_spin(flag, cond, val, dst, t0, t1):
            L, D = lab("SP"), lab("SPD")
            a(f"""
            v_mov_b32 v{t0}, 0
            s_mov_b32 s{sIT}, 0
            """)
            a.label(L)
            a(f"""
            ds_read_b32 v{t1}, v{t0} offset:{flag}
            s_waitcnt lgkmcnt(0)
            v_readfirstlane_b32 s{dst}, v{t1}
            s_cmp_{cond}_u32 s{dst}, {val}
            s_cbranch_scc1 {D}
            s_sleep 1
            s_add_u32 s{sIT}, s{sIT}, 1
            s_cmp_lt_u32 s{sIT}, {cfg.limit*20}
            s_cbranch_scc1 {L}
            """)
            a.label(D)
        def tag_bytes():
            a(f"""
            v_mov_b32 v{TB+3}, s{sTAG}
            v_and_b32 v{TB}, 0xff, v{TB+3}
            v_bfe_u32 v{TB+1}, v{TB+3}, 8, 8
            v_bfe_u32 v{TB+2}, v{TB+3}, 16, 8
            v_lshrrev_b32 v{TB+3}, 24, v{TB+3}
            """)
        def xor_check(regs4, t):
            first = True
            for b in regs4:
                for k in range(4):
                    a(f"v_xor_b32 v{b+k}, v{TB+k}, v{b+k}")
            for b in regs4:
                if first:
                    a(f"v_or3_b32 v{t}, v{b}, v{b+1}, v{b+2}")
                    a(f"v_or_b32 v{t}, v{t}, v{b+3}")
                    first = False
                else:
                    a(f"v_or3_b32 v{t}, v{t}, v{b}, v{b+1}")
                    a(f"v_or3_b32 v{t}, v{t}, v{b+2}, v{b+3}")
            a(f"v_and_b32 v{t}, 0xff, v{t}")
        def partial64(acc, base, t):
            reduce8(a, acc)
            row_allreduce(a, [acc, acc + 4], "v_add_f32", steps=(8,))
            a(f"""
            v_and_b32 v{t}, 8, v1
            v_cmp_ne_u32 vcc, 0, v{t}
            s_nop 1
            v_cndmask_b32 v{acc}, v{acc}, v{acc+4}, vcc
            ds_write_b32 v7, v{acc} offset:{base}
            """)
        def w0_hook(final):
            S, H, R, GOT, R2 = lab("HS"), lab("HH"), lab("HR"), lab("HG"), lab("HQ")
            a(f"""
            s_cmp_lg_u32 s3, 0
            s_cbranch_scc1 {S}
            s_cmp_lg_u32 s{sPUB}, 0
            s_cbranch_scc1 {S}
            s_mov_b32 s{sIT}, 0
            s_cmp_lg_u32 s{sTAG}, 0
            s_cbranch_scc1 {H}
            """)
            a.wait_for("tag")
            a.label(R)
            a(f"""
            v_readfirstlane_b32 s{sTAG}, v58
            s_cmp_eq_u32 s{sTAG}, 0
            s_cselect_b32 s{sTAG}, s{sCAND}, s{sTAG}
            s_cmp_lg_u32 s{sTAG}, 0
            s_cbranch_scc1 {GOT}
            """)
            a.vmem(f"buffer_load_dword v58, off, s[{sDBG}:{sDBG+3}], 0 sc1", "tag", optional=True)
            if final:
                a(f"""
                s_waitcnt vmcnt(0)
                s_add_u32 s{sIT}, s{sIT}, 1
                s_cmp_lt_u32 s{sIT}, {cfg.limit}
                s_cbranch_scc1 {R}
                s_mov_b32 s{sTAG}, 1
                """)
            else:
                a(f"s_branch {S}")
            a.label(GOT)
            a(f"""
            v_mov_b32 v56, 0
            v_mov_b32 v59, s{sTAG}
            ds_write_b32 v56, v59 offset:{F_TAG}
            """)
            a.label(H)
            a("v_mov_b32 v56, 0")
            a.label(R2)
            a(f"""
            ds_read_b64 v[96:97], v56 offset:{F_CQ}
            s_waitcnt lgkmcnt(0)
            v_readfirstlane_b32 s64, v96
            v_readfirstlane_b32 s65, v97
            s_add_u32 s64, s64, s65
            s_cmp_eq_u32 s64, 16
            """)
            if final:
                OKL = lab("HO")
                a(f"""
                s_cbranch_scc1 {OKL}
                s_add_u32 s{sIT}, s{sIT}, 1
                s_cmp_lt_u32 s{sIT}, {cfg.limit*20}
                s_cbranch_scc1 {R2}
                """)
                a.label(OKL)
            else:
                a(f"s_cbranch_scc0 {S}")
            a(f"""
            v_and_b32 v56, 1, v3
            v_lshlrev_b32 v59, 11, v56
            v_lshl_add_u32 v59, v4, 4, v59
            """)
            for w in range(8):
                a(f"ds_read_b128 v[{64+4*w}:{67+4*w}], v59 offset:{LQP + w*256}")
            tag_bytes()
            a(f"""
            v_mov_b32 v59, s{sQPUB}
            v_mov_b32 v96, s{sGPUB}
            v_cmp_ne_u32 vcc, 0, v56
            s_nop 1
            v_cndmask_b32 v59, v59, v96, vcc
            v_lshl_add_u32 v59, v4, 4, v59
            s_waitcnt lgkmcnt(0)
            """)
            tree8(a, 64, 4, 4)
            for k in range(4):
                a(f"v_bfi_b32 v{64+k}, s{sMSK}, v{64+k}, v{TB+k}")
            a("s_mov_b64 exec, 0xffffffff")
            a.vmem(f"buffer_store_dwordx4 v[64:67], v59, s[{sWS}:{sWS+3}], 0 offen sc1", "pub", optional=True)
            a(f"""
            s_mov_b64 exec, -1
            s_mov_b32 s{sPUB}, 1
            """)
            a.label(S)
        def q_poll_issue():
            a("v_lshlrev_b32 v10, 4, v1")
            a.vmem(f"buffer_load_dwordx4 v[32:35], v10, s[{sWS}:{sWS+3}], s{sQPL} offen sc1", "qp")
            a.vmem(f"buffer_load_dwordx4 v[36:39], v10, s[{sWS}:{sWS+3}], s{sQPL} offen offset:1024 sc1", "qp")
            if heavy:
                a(f"""
                v_and_b32 v11, s{sHPM}, v1
                v_lshlrev_b32 v11, 8, v11
                v_bfe_u32 v56, v1, 2, 1
                v_lshl_add_u32 v11, v56, 10, v11
                v_lshl_add_u32 v11, v3, 4, v11
                """)
                a.vmem(f"buffer_load_dwordx4 v[40:43], v11, s[{sWS}:{sWS+3}], s{sHPL} offen sc1", "qp")
        def q_poll_check():
            regs = [32, 36] + ([40] if heavy else [])
            lds_spin(F_TAG, "lg", 0, sTAG, 56, 59)
            tag_bytes()
            a.wait_for("qp")
            L, D = lab("QL"), lab("QD")
            a(f"s_mov_b32 s{sIT}, 0")
            a.label(L)
            xor_check(regs, 56)
            a(f"""
            v_cmp_ne_u32 vcc, 0, v56
            s_mov_b64 exec, -1
            s_cbranch_vccz {D}
            s_add_u32 s{sIT}, s{sIT}, 1
            s_cmp_lt_u32 s{sIT}, {cfg.limit}
            s_cbranch_scc0 {D}
            s_sleep {cfg.sleep}
            s_mov_b64 exec, vcc
            buffer_load_dwordx4 v[32:35], v10, s[{sWS}:{sWS+3}], s{sQPL} offen sc1
            buffer_load_dwordx4 v[36:39], v10, s[{sWS}:{sWS+3}], s{sQPL} offen offset:1024 sc1
            """)
            if heavy:
                a(f"buffer_load_dwordx4 v[40:43], v11, s[{sWS}:{sWS+3}], s{sHPL} offen sc1")
            a(f"""
            s_waitcnt vmcnt(0)
            s_branch {L}
            """)
            a.label(D)
            pk_add(a, 32, 32, 36)
            pk_add(a, 34, 34, 38)
            for k in range(4):
                a(f"v_mov_b32 v{36+k}, v{32+k}")
            a("s_nop 1")
            for k in range(4):
                a(f"v_permlane32_swap_b32 v{32+k}, v{36+k}")
            a(f"""
            v_add_f32 v32, v32, v36
            v_add_f32 v33, v33, v37
            v_add_f32 v34, v34, v38
            v_add_f32 v35, v35, v39
            v_cvt_pk_bf16_f32 v32, v32, v33
            v_cvt_pk_bf16_f32 v33, v34, v35
            v_and_b32 v56, 31, v1
            v_lshlrev_b32 v56, 3, v56
            s_mul_i32 s64, s3, {QS}
            v_add_u32 v56, s64, v56
            ds_write_b64 v56, v[32:33] offset:{LQ}
            """)
            lds_count(F_CQ2, 56, 59)
            prof_at(2)
            if heavy:
                a("s_nop 1")
                for k in range(4):
                    dpp(a, "v_add_f32", 40 + k, 40 + k, 40 + k, "quad_perm:[1,0,3,2]")
                a("s_nop 1")
                for k in range(4):
                    dpp(a, "v_add_f32", 40 + k, 40 + k, 40 + k, "quad_perm:[2,3,0,1]")
                for k in range(4):
                    a(f"v_mul_f32 v{40+k}, s{sHF}, v{40+k}")
                a(f"""
                v_and_b32 v56, 4, v1
                v_cmp_ne_u32 vcc, 0, v56
                """)
                for k in range(4):
                    a(f"v_mov_b32_dpp v{44+k}, v{40+k} row_half_mirror row_mask:0xf bank_mask:0xf")
                for k in range(4):
                    a(f"v_cndmask_b32 v{32+k}, v{40+k}, v{44+k}, vcc")
                for k in range(4):
                    a(f"v_cndmask_b32 v{44+k}, v{44+k}, v{40+k}, vcc")
                a(f"""
                v_cvt_pk_bf16_f32 v32, v32, v33
                v_cvt_pk_bf16_f32 v33, v34, v35
                v_cvt_pk_bf16_f32 v44, v44, v45
                v_cvt_pk_bf16_f32 v45, v46, v47
                v_lshlrev_b32 v36, 16, v32
                v_and_b32 v37, 0xffff0000, v32
                v_lshlrev_b32 v38, 16, v33
                v_and_b32 v39, 0xffff0000, v33
                """)
                for k in range(4):
                    a(f"v_mul_f32 v{40+k}, {f32(-LOG2E)}, v{36+k}")
                for k in range(4):
                    a(f"v_exp_f32 v{40+k}, v{40+k}")
                a("s_nop 0")
                for k in range(4):
                    a(f"v_add_f32 v{40+k}, 1.0, v{40+k}")
                for k in range(4):
                    a(f"v_rcp_f32 v{40+k}, v{40+k}")
                a("s_nop 0")
                for k in range(4):
                    a(f"v_mul_f32 v{36+k}, v{36+k}, v{40+k}")
                a(f"""
                v_cvt_pk_bf16_f32 v32, v36, v37
                v_cvt_pk_bf16_f32 v33, v38, v39
                v_lshlrev_b32 v36, 16, v32
                v_and_b32 v37, 0xffff0000, v32
                v_lshlrev_b32 v38, 16, v33
                v_and_b32 v39, 0xffff0000, v33
                v_lshlrev_b32 v40, 16, v44
                v_and_b32 v41, 0xffff0000, v44
                v_lshlrev_b32 v42, 16, v45
                v_and_b32 v43, 0xffff0000, v45
                """)
                for k in range(4):
                    a(f"v_mul_f32 v{36+k}, v{36+k}, v{40+k}")
                a(f"""
                v_cvt_pk_bf16_f32 v{HR}, v36, v37
                v_cvt_pk_bf16_f32 v{HR+1}, v38, v39
                """)
        PRE = 100
        def pre_issue():
            L = lab("PI")
            a(f"""
            s_cmp_lg_u32 s3, 0
            s_cbranch_scc1 {L}
            v_lshlrev_b32 v56, 5, v1
            """)
            for k, sr in enumerate((sX, sWR, sGW)):
                a.vmem(f"buffer_load_dwordx4 v[{PRE+8*k}:{PRE+8*k+3}], v56, s[{sr}:{sr+3}], 0 offen", "pre", optional=True)
                a.vmem(f"buffer_load_dwordx4 v[{PRE+8*k+4}:{PRE+8*k+7}], v56, s[{sr}:{sr+3}], 0 offen offset:16", "pre", optional=True)
            a.label(L)
        def prelude():
            L = lab("PC")
            X, W, Gw = PRE, PRE + 8, PRE + 16
            a(f"""
            s_cmp_lg_u32 s3, 0
            s_cbranch_scc1 {L}
            """)
            a.wait_for("pre")
            a(f"""
            v_mov_b32 v64, 0
            v_mov_b32 v65, 0
            """)
            for d in range(8):
                a(f"v_dot2c_f32_bf16 v64, v{X+d}, v{W+d}")
            for d in range(8):
                a(f"""
                v_lshlrev_b32 v66, 16, v{X+d}
                v_and_b32 v67, 0xffff0000, v{X+d}
                v_lshlrev_b32 v68, 16, v{Gw+d}
                v_and_b32 v69, 0xffff0000, v{Gw+d}
                v_mul_f32 v66, v66, v68
                v_mul_f32 v67, v67, v69
                v_cvt_pk_bf16_f32 v66, v66, v67
                v_lshlrev_b32 v67, 16, v66
                v_and_b32 v66, 0xffff0000, v66
                v_add_f32 v65, v65, v66
                v_add_f32 v65, v65, v67
                """)
            row_allreduce(a, [64, 65], "v_add_f32")
            cross_rows(a, [64, 65], 66, "v_add_f32")
            a(f"""
            v_cvt_pk_bf16_f32 v64, v64, v65
            v_and_b32 v65, 0xffff0000, v64
            v_lshlrev_b32 v64, 16, v64
            v_mul_f32 v64, {f32(-LOG2E)}, v64
            v_mul_f32 v65, {f32(-LOG2E)}, v65
            v_exp_f32 v64, v64
            v_exp_f32 v65, v65
            s_nop 0
            v_add_f32 v64, 1.0, v64
            v_add_f32 v65, 1.0, v65
            v_rcp_f32 v64, v64
            v_rcp_f32 v65, v65
            s_nop 0
            v_cvt_pk_bf16_f32 v64, v64, v65
            v_and_b32 v68, 0xffff0000, v64     ; g
            v_lshlrev_b32 v70, 16, v64         ; sr
            v_sub_f32 v69, 1.0, v68
            v_cvt_pk_bf16_f32 v69, v69, v69
            v_lshlrev_b32 v69, 16, v69         ; 1-g
            v_mov_b32 v71, 1
            v_mov_b32 v56, 0
            ds_write_b128 v56, v[68:71] offset:{LPRE}
            """)
            a.label(L)

        hk = [int(x) for x in cfg.hooks.split(",")]
        khooks = {}
        khooks.setdefault(cfg.qpoll, []).append(q_poll_issue)
        khooks.setdefault(cfg.qpoll + cfg.qchk, []).append(q_poll_check)
        if not heavy:
            khooks.setdefault(10, []).append(pre_issue)
            khooks.setdefault(14, []).append(prelude)

        stream.extend([(ld_xg, ())] + [(ld_g, (i,)) for i in range(4)])
        if heavy:
            stream.append((ld_g2, ()))
        stream.extend([(ld_k, (n,)) for n in range(32)])
        stream.extend([(ld_v, (G, i)) for G in range(2) for i in range(8)])
        assert cfg.burst <= 4
        slot(cfg.burst + 1, paced=False)
        a(f"""
        s_waitcnt lgkmcnt(0)
        s_barrier
        """)
        a.wait_for("wq")
        gemv_rows(a, 4, 16, 8, 48, 56, 59, slot)
        partial64(48, LQP, 56)
        lds_count(F_CQ, 56, 59)
        prof_at(1)
        fill("g", 10 if heavy else 5)
        a.wait_for("g")
        gemv_rows(a, 4, GR, XG, 48, 56, 59, slot)
        if heavy:
            for r0 in (4, 6):
                L = lab("GS")
                a(f"""
                s_cmp_lg_u32 s{sISQ}, 0
                s_cbranch_scc1 {L}
                """)
                gemv_rows(a, r0 + 2, GR, XG, 48, 56, 59, None, first=r0)
                a.label(L)
                slot()
        partial64(48, LGP, 56)
        lds_count(F_CG, 56, 59)
        prof_at(7)
        nxt = next(args[0] for fn, args in stream if fn is ld_k)
        for i, n in enumerate(hk):
            assert nxt + n < cfg.qpoll
            khooks[nxt + n] = [(lambda f=(i == len(hk) - 1): w0_hook(f))] + khooks.get(nxt + n, [])
        while a.count("v0") < P + 1:
            slot()
        a(f"""
        v_and_b32 v10, 7, v1
        v_mul_u32_u24 v10, {QS}, v10
        v_bfe_u32 v11, v1, 3, 1
        v_lshl_add_u32 v10, v11, 4, v10
        v_lshl_add_u32 v10, v3, 5, v10
        v_mov_b32 v61, 0xffff
        v_lshlrev_b32 v11, 4, v11
        v_lshlrev_b32 v61, v11, v61          ; P mask
        v_lshlrev_b32 v2, 13, v3
        v_lshl_add_u32 v2, v4, 4, v2
        """)
        lds_spin(F_CQ2, "ge", 8, 64, 56, 59)
        prof_at(3)
        a(f"""
        ds_read_b128 v[{QR}:{QR+3}], v10 offset:{LQ}
        ds_read_b128 v[{QR+4}:{QR+7}], v10 offset:{LQ+128}
        s_waitcnt lgkmcnt(0)
        """)
        def fixup(t):
            for ip in range(2):
                T = 2 * t + ip
                D = DR + (T & 3) * 4
                dpp(a, "v_add_f32", SR + T, D + 1, D, "row_ror:8", bank="0x3")
                dpp(a, "v_add_f32", SR + T, D + 2, D + 3, "row_ror:8", bank="0xc")
        for t in range(8):
            a.wait_for(f"k{t}")
            for hf in range(2):
                for ip in range(2):
                    T = 2 * t + ip
                    D = DR + (T & 3) * 4
                    r = KR + (4 * t + 2 * ip + hf) * 4
                    c = "0" if hf == 0 else f"v[{D}:{D+3}]"
                    a(f"v_mfma_f32_16x16x32_bf16 v[{D}:{D+3}], v[{r}:{r+3}], v[{QR+4*hf}:{QR+4*hf+3}], {c}")
            if t == 1:
                a("s_nop 3")
            if t > 0:
                fixup(t - 1)
            if t in (1, 3, 5):
                slot()
        slot()
        a("s_nop 7")
        fixup(7)
        st["qk"] = True
        stream.extend([(ld_v, (G, i)) for G in (2, 3) for i in range(8)])
        prof_at(4)
        for r in range(32):
            a(f"v_mov_b32 v{OR_+r}, 0")
        slot()
        a(f"v_max3_f32 v8, v{SR}, v{SR+1}, v{SR+2}")
        for r in range(3, 15, 2):
            a(f"v_max3_f32 v8, v8, v{SR+r}, v{SR+r+1}")
        a(f"v_max_f32 v8, v8, v{SR+15}")
        row_allreduce(a, [8], "v_max_f32", steps=(8,))
        cross_rows(a, [8], 10, "v_max_f32")
        a(f"""
        v_mul_f32 v8, {f32(CSC)}, v8
        v_mov_b32 v11, {f32(CSC)}
        v_mov_b32 v9, 0
        v_and_b32 v10, 7, v1
        v_lshlrev_b32 v10, 5, v10
        s_lshl_b32 s64, s3, 2
        v_add_u32 v60, s64, v10           ; head*32 + w*4
        ds_write_b32 v60, v8 offset:{LMX}
        """)
        for r in range(16):
            a(f"v_fma_f32 v{SR+r}, v{SR+r}, v11, -v8")
        lds_count(F_CM, 56, 59)
        slot()
        for r in range(16):
            a(f"v_exp_f32 v{SR+r}, v{SR+r}")
        a("s_nop 0")
        for r in range(16):
            a(f"v_cvt_pk_bf16_f32 v{PR+r}, v{SR+r}, v{SR+r}")
        slot()
        for r in range(16):
            a(f"v_and_b32 v{PR+r}, v61, v{PR+r}")
        for r in range(16):
            a(f"v_dot2c_f32_bf16 v9, s{sONE}, v{PR+r}")
        a("s_nop 1")
        row_allreduce(a, [9], "v_add_f32", steps=(8,))
        cross_rows(a, [9], 10, "v_add_f32")
        st["sm"] = True
        tl = ([(ld_wd, (i,)) for i in range(4)] if heavy else [])
        to = [(ld_wo, (i,)) for i in range(4)]
        stream.extend(to + tl if cfg.od else tl + to)
        tb = 0
        for G in range(4):
            vb = (VR0 + G * 32) if G < 2 else (VR1 + (G - 2) * 32)
            fill(f"v{G}", 8)
            a.wait_for(f"v{G}")
            if G == 3:
                prof_at(5)
                slot(cfg.extra, paced=False)
                a(f"""
                v_mov_b32 v56, 0
                v_and_b32 v10, 7, v1
                v_lshlrev_b32 v10, 5, v10
                ds_read_b32 v59, v56 offset:{F_CM}
                ds_read_b128 v[100:103], v10 offset:{LMX}
                ds_read_b128 v[104:107], v10 offset:{LMX+16}
                """)
            for j in range(4):
                T = TR + tb * 8
                tb ^= 1
                for p in range(4):
                    ra = vb + (2 * p) * 4 + j
                    rb = vb + (2 * p + 1) * 4 + j
                    a(f"v_perm_b32 v{T+p}, v{rb}, v{ra}, s{sPA}")
                    a(f"v_perm_b32 v{T+4+p}, v{rb}, v{ra}, s{sPB}")
                a("s_nop 1")
                for h in range(2):
                    e = 2 * j + h
                    a(f"v_mfma_f32_16x16x32_bf16 v[{OR_+4*e}:{OR_+4*e+3}], v[{T+4*h}:{T+4*h+3}], v[{PR+4*G}:{PR+4*G+3}], v[{OR_+4*e}:{OR_+4*e+3}]")
                if j in (1, 3) and G < 3:
                    slot()
            st["pv"] = G
        MS, MD = lab("MS"), lab("MD")
        a(f"""
        s_mov_b32 s{sIT}, 0
        """)
        a.label(MS)
        a(f"""
        s_waitcnt lgkmcnt(0)
        v_readfirstlane_b32 s64, v59
        s_cmp_ge_u32 s64, 8
        s_cbranch_scc1 {MD}
        s_add_u32 s{sIT}, s{sIT}, 1
        s_cmp_lt_u32 s{sIT}, {cfg.limit*20}
        s_cbranch_scc0 {MD}
        ds_read_b32 v59, v56 offset:{F_CM}
        ds_read_b128 v[100:103], v10 offset:{LMX}
        ds_read_b128 v[104:107], v10 offset:{LMX+16}
        s_branch {MS}
        """)
        a.label(MD)
        a(f"""
        v_max3_f32 v10, v100, v101, v102
        v_max3_f32 v10, v10, v103, v104
        v_max3_f32 v10, v10, v105, v106
        v_max_f32 v10, v10, v107            ; M (wg)
        v_sub_f32 v108, v8, v10
        v_exp_f32 v108, v108
        v_and_b32 v11, 7, v1
        v_mul_u32_u24 v11, {HS}, v11
        v_bfe_u32 v109, v1, 3, 1
        v_lshl_add_u32 v11, v109, 4, v11
        v_lshl_add_u32 v11, v3, 7, v11
        s_mul_i32 s64, s3, {WSZ}
        v_add_u32 v11, s64, v11
        v_mul_f32 v9, v9, v108
        ds_write_b32 v60, v9 offset:{LL}
        """)
        F = TR
        for r in range(4):
            for e in range(4):
                dpp(a, "v_add_f32", F + 4 * r + e, OR_ + 4 * e + r, OR_ + 4 * e + r, "row_ror:8", bank="0x3")
                dpp(a, "v_add_f32", F + 4 * r + e, OR_ + 4 * (4 + e) + r, OR_ + 4 * (4 + e) + r, "row_ror:8", bank="0xc")
            for k in (0, 2):
                a(f"v_pk_mul_f32 v[{F+4*r+k}:{F+4*r+k+1}], v[{F+4*r+k}:{F+4*r+k+1}], v[108:109] op_sel_hi:[1,0]")
            a(f"ds_write_b128 v11, v[{F+4*r}:{F+4*r+3}] offset:{LO + r*32}")
        lds_count(F_CO, 56, 59, rtn=64)
        NL = lab("NL")
        a(f"""
        s_cmp_eq_u32 s64, 0
        s_cselect_b32 s{sPOL}, 1, 0
        s_cmp_lg_u32 s64, 7
        s_cbranch_scc1 {NL}
        v_lshrrev_b32 v11, 5, v1
        v_mul_u32_u24 v11, {HS}, v11
        v_and_b32 v56, 31, v1
        v_lshl_add_u32 v11, v56, 4, v11
        v_and_b32 v56, 7, v1
        v_lshlrev_b32 v56, 5, v56
        """)
        def rd(k):
            for w in range(8):
                r = 128 + (k * 8 + w) * 4
                a(f"ds_read_b128 v[{r}:{r+3}], v11 offset:{LO + w*WSZ + 2*k*HS}")
        rd(0)
        a(f"""
        ds_read_b128 v[100:103], v56 offset:{LL}
        ds_read_b128 v[104:107], v56 offset:{LL+16}
        v_lshrrev_b32 v59, 2, v1
        v_lshlrev_b32 v59, 12, v59
        v_and_b32 v56, 3, v1
        v_lshl_add_u32 v59, v56, 4, v59
        s_lshl_b32 s64, s{sG}, 18
        s_lshl_b32 s65, s{sJ}, 6
        s_add_u32 s64, s64, s65
        s_add_u32 s64, s64, {AO}
        s_lshl_b32 s66, s{sG}, 13
        s_lshl_b32 s65, s{sJ}, 4
        s_add_u32 s66, s66, s65
        s_add_u32 s66, s66, {AML}
        v_lshlrev_b32 v56, 10, v1
        """)
        for k in range(4):
            if k == 0:
                a("s_waitcnt lgkmcnt(2)")
            else:
                a("s_waitcnt lgkmcnt(0)")
            if k < 3:
                rd(k + 1)
            b = 128 + k * 32
            tree8(a, b, 4, 4)
            for q in range(4):
                a(f"v_bfi_b32 v{b+q}, s{sMSK}, v{b+q}, v{TB+q}")
            a.vmem(f"buffer_store_dwordx4 v[{b}:{b+3}], v59, s[{sWS}:{sWS+3}], s64 offen sc1", "ost", optional=True)
            if k < 3:
                a("s_add_u32 s64, s64, 65536")
            if k == 0:
                a(f"""
                s_waitcnt lgkmcnt(8)
                v_pk_add_f32 v[100:101], v[100:101], v[102:103]
                v_pk_add_f32 v[104:105], v[104:105], v[106:107]
                v_pk_add_f32 v[100:101], v[100:101], v[104:105]
                v_add_f32 v101, v100, v101
                v_mov_b32 v100, v10
                v_mov_b32 v102, s{sTAG}
                v_mov_b32 v103, s{sTAG}
                s_mov_b64 exec, 0xff
                """)
                a.vmem(f"buffer_store_dwordx4 v[100:103], v56, s[{sWS}:{sWS+3}], s66 offen sc1", "ost", optional=True)
                a("s_mov_b64 exec, -1")
        a.label(NL)
        prof_at(6)
        def h1_addr():
            a(f"""
            v_lshlrev_b32 v110, 4, v1
            v_lshrrev_b32 v111, 2, v1
            v_lshlrev_b32 v111, 4, v111
            s_lshl_b32 s66, s2, 12
            s_add_u32 s66, s66, {AO}
            s_lshr_b32 s67, s2, 3
            s_lshl_b32 s67, s67, 10
            s_add_u32 s67, s67, {AML}
            """)
        def h1_issue(opt):
            for k in range(4):
                s = f"buffer_load_dwordx4 v[{128+4*k}:{131+4*k}], v110, s[{sWS}:{sWS+3}], s66 offen offset:{1024*k} sc1"
                a.vmem(s, "h1", optional=True) if opt else a(s)
                s = f"buffer_load_dwordx3 v[{144+4*k}:{146+4*k}], v111, s[{sWS}:{sWS+3}], s67 offen offset:{256*k} sc1"
                a.vmem(s, "h1", optional=True) if opt else a(s)
        if heavy and not cfg.od:
            fill("wd", 4)
            a.wait_for("wd")
            slot(8, paced=False)
        else:
            while stream:
                slot()
        h1_addr()
        L = lab("NP")
        a(f"""
        s_cmp_eq_u32 s{sPOL}, 0
        s_cbranch_scc1 {L}
        """)
        h1_issue(True)
        a.label(L)
        if not heavy:
            a(f"""
            v_and_b32 v112, 31, v1
            v_lshlrev_b32 v112, 1, v112
            s_lshl_b32 s68, s{sU}, 6
            """)
            a.vmem(f"buffer_load_ushort v113, v112, s[{sX}:{sX+3}], s68 offen", "xf")
        def d_stage():
            gemv_rows(a, 4, WDR, HR, 120, 56, 59)
            reduce8(a, 120)
            a(f"""
            v_and_b32 v56, 1, v3
            v_lshlrev_b32 v56, 1, v56
            v_lshrrev_b32 v59, 1, v3
            v_or_b32 v56, v56, v59                ; sigma(g4)
            v_lshl_add_u32 v56, v4, 3, v56
            v_lshlrev_b32 v56, 2, v56
            s_lshl_b32 s64, s3, 9
            v_add_u32 v56, s64, v56
            v_add_u32 v56, {LDP}, v56
            ds_write2_b32 v56, v120, v124 offset0:0 offset1:4
            """)
            lds_count(F_CD, 56, 59, rtn=64)
            L = lab("ND")
            a(f"""
            s_cmp_lg_u32 s64, 7
            s_cbranch_scc1 {L}
            v_and_b32 v56, 31, v1
            v_lshlrev_b32 v56, 4, v56
            """)
            for w in range(8):
                a(f"ds_read_b128 v[{64+4*w}:{67+4*w}], v56 offset:{LDP + w*512}")
            a(f"""
            v_bfe_u32 v56, v1, 3, 2
            v_mul_u32_u24 v56, {FINB}, v56
            v_and_b32 v59, 7, v1
            v_lshl_add_u32 v56, v59, 4, v56
            s_and_b32 s64, s{sU}, 7
            s_mul_i32 s64, s64, {4*FINB}
            s_lshr_b32 s65, s{sU}, 3
            s_lshl_b32 s65, s65, 7
            s_add_u32 s64, s64, s65
            s_add_u32 s64, s64, {OP + 256*128}
            s_waitcnt lgkmcnt(0)
            """)
            tree8(a, 64, 4, 4)
            for k in range(4):
                a(f"v_bfi_b32 v{64+k}, s{sMSK}, v{64+k}, v{TB+k}")
            a("s_mov_b64 exec, 0xffffffff")
            a.vmem(f"buffer_store_dwordx4 v[64:67], v56, s[{sWS}:{sWS+3}], s64 offen sc1", "yst", optional=True)
            a("s_mov_b64 exec, -1")
            a.label(L)
            prof_at(11)
        if heavy:
            if cfg.od:
                a.wait_for("wd")
            d_stage()
        NP, PL, PD = lab("NP"), lab("PL"), lab("PD")
        a(f"""
        s_cmp_eq_u32 s{sPOL}, 0
        s_cbranch_scc1 {NP}
        s_mov_b32 s{sIT}, 0
        """)
        a.label(PL)
        a("s_waitcnt vmcnt(0)")
        xor_check([128, 132, 136, 140], 56)
        for k in range(4):
            a(f"v_xor_b32 v{147+4*k}, s{sTAG}, v{146+4*k}")
        a(f"""
        v_or3_b32 v56, v56, v147, v151
        v_or3_b32 v56, v56, v155, v159
        v_cmp_ne_u32 vcc, 0, v56
        s_mov_b64 exec, -1
        s_cbranch_vccz {PD}
        s_add_u32 s{sIT}, s{sIT}, 1
        s_cmp_lt_u32 s{sIT}, {cfg.limit}
        s_cbranch_scc0 {PD}
        s_sleep {cfg.sleep}
        s_mov_b64 exec, vcc
        """)
        h1_issue(False)
        a(f"s_branch {PL}")
        a.label(PD)
        prof_at(14)
        a(f"""
        v_max3_f32 v100, v144, v148, v152
        v_max_f32 v100, v100, v156
        """)
        row_allreduce(a, [100], "v_max_f32", steps=(4, 8))
        cross_rows(a, [100], 56, "v_max_f32")
        for k in range(4):
            a(f"v_sub_f32 v{144+4*k}, v{144+4*k}, v100")
        for k in range(4):
            a(f"v_exp_f32 v{144+4*k}, v{144+4*k}")
        a(f"""
        s_nop 0
        v_mul_f32 v104, v144, v145
        """)
        for d in range(4):
            a(f"v_mul_f32 v{100+d}, v144, v{128+d}")
        for k in range(1, 4):
            a(f"v_fmac_f32 v104, v{144+4*k}, v{145+4*k}")
            for d in range(4):
                a(f"v_fmac_f32 v{100+d}, v{144+4*k}, v{128+4*k+d}")
        row_allreduce(a, [100, 101, 102, 103, 104], "v_add_f32", steps=(4, 8))
        cross_rows(a, [100, 101, 102, 103, 104], 105, "v_add_f32")
        a(f"""
        v_rcp_f32 v104, v104
        v_lshlrev_b32 v56, 4, v1
        v_mov_b32 v106, 1
        v_mov_b32 v107, 1
        v_mul_f32 v100, v100, v104
        v_mul_f32 v101, v101, v104
        v_mul_f32 v102, v102, v104
        v_mul_f32 v103, v103, v104
        v_cvt_pk_bf16_f32 v104, v100, v101
        v_cvt_pk_bf16_f32 v105, v102, v103
        s_mov_b64 exec, 0xf
        ds_write_b128 v56, v[104:107] offset:{LOV}
        s_mov_b64 exec, -1
        """)
        a.label(NP)
        OL, OD = lab("OL"), lab("OD")
        a(f"""
        v_lshlrev_b32 v56, 4, v3
        v_lshrrev_b32 v114, 2, v4
        v_mul_u32_u24 v114, {FINB}, v114
        v_and_b32 v59, 3, v4
        v_lshl_add_u32 v114, v59, 5, v114
        v_lshrrev_b32 v59, 5, v1
        v_lshl_add_u32 v114, v59, 4, v114
        s_mul_i32 s64, s3, {4*FINB}
        s_lshl_b32 s65, s2, 7
        s_add_u32 s64, s64, s65
        s_add_u32 s64, s64, {OP}
        s_mov_b32 s{sMC}, 0xffff
        s_mov_b32 s{sMC+1}, 0xffff
        s_mov_b32 s{sIT}, 0
        """)
        a.label(OL)
        a(f"""
        ds_read_b128 v[104:107], v56 offset:{LOV}
        s_waitcnt lgkmcnt(0)
        v_cmp_ne_u32 vcc, 1, v106
        s_cbranch_vccz {OD}
        s_sleep 1
        s_add_u32 s{sIT}, s{sIT}, 1
        s_cmp_lt_u32 s{sIT}, {cfg.limit*20}
        s_cbranch_scc1 {OL}
        """)
        a.label(OD)
        prof_at(8)
        a.wait_for("wo")
        gemv_rows(a, 4, WOR, 104, 120, 56, 59)
        a("s_nop 1")
        for k in range(4):
            a(f"v_permlane32_swap_b32 v{120+k}, v{124+k}")
        for k in range(4):
            a(f"v_add_f32 v{120+k}, v{120+k}, v{124+k}")
        for k in range(4):
            a(f"v_mov_b32 v{124+k}, v{120+k}")
        a("s_nop 1")
        for k in range(4):
            a(f"v_permlane16_swap_b32 v{120+k}, v{124+k}")
        for k in range(4):
            a(f"v_add_f32 v{120+k}, v{120+k}, v{124+k}")
        for k in range(4):
            a(f"v_bfi_b32 v{120+k}, s{sMSK}, v{120+k}, v{TB+k}")
        a(f"""
        s_mov_b64 exec, s[{sMC}:{sMC+1}]
        buffer_store_dwordx4 v[120:123], v114, s[{sWS}:{sWS+3}], s64 offen sc1
        s_mov_b64 exec, -1
        """)
        prof_at(9)
        if heavy:
            a("s_branch L_FIN_END")
            return
        FL, FD, F1, F2, F3, F4 = [lab("F") for _ in range(6)]
        a(f"""
        s_mul_i32 s66, s{sU}, {FINB}
        s_add_u32 s66, s66, {OP}
        s_lshl_b32 s67, s3, 9
        s_add_u32 s67, s67, s66
        s_add_u32 s67, s67, 32768
        s_lshl_b32 s65, s3, 12
        s_add_u32 s66, s66, s65
        s_mov_b64 s[{sMA}:{sMA+1}], -1
        s_cmp_lt_u32 s3, 7
        s_cselect_b32 s{sMB}, -1, 0
        s_mov_b32 s{sMB+1}, 0
        v_mov_b32 v144, 0
        v_mov_b32 v145, 0
        v_mov_b32 v146, 0
        v_mov_b32 v147, 0
        s_mov_b32 s{sIT}, 0
        """)
        a.label(FL)
        a(f"""
        s_cmp_eq_u64 s[{sMA}:{sMA+1}], 0
        s_cbranch_scc1 {F1}
        s_mov_b64 exec, s[{sMA}:{sMA+1}]
        """)
        for k in range(4):
            a(f"buffer_load_dwordx4 v[{128+4*k}:{131+4*k}], v110, s[{sWS}:{sWS+3}], s66 offen offset:{1024*k} sc1")
        a.label(F1)
        a(f"""
        s_cmp_eq_u64 s[{sMB}:{sMB+1}], 0
        s_cbranch_scc1 {F2}
        s_mov_b64 exec, s[{sMB}:{sMB+1}]
        buffer_load_dwordx4 v[144:147], v110, s[{sWS}:{sWS+3}], s67 offen sc1
        """)
        a.label(F2)
        a(f"""
        s_waitcnt vmcnt(0)
        s_mov_b64 exec, s[{sMA}:{sMA+1}]
        """)
        xor_check([128, 132, 136, 140], 56)
        a(f"""
        v_cmp_ne_u32 s[{sMA}:{sMA+1}], 0, v56
        s_mov_b64 exec, s[{sMB}:{sMB+1}]
        """)
        xor_check([144], 56)
        a(f"""
        v_cmp_ne_u32 s[{sMB}:{sMB+1}], 0, v56
        s_mov_b64 exec, -1
        s_nop 3
        s_or_b64 vcc, s[{sMA}:{sMA+1}], s[{sMB}:{sMB+1}]
        s_cmp_eq_u64 vcc, 0
        s_cbranch_scc1 {FD}
        s_add_u32 s{sIT}, s{sIT}, 1
        s_cmp_lt_u32 s{sIT}, {cfg.limit}
        s_cbranch_scc0 {FD}
        s_sleep {cfg.sleep}
        s_branch {FL}
        """)
        a.label(FD)
        prof_at(12)
        pk_add(a, 128, 128, 132); pk_add(a, 130, 130, 134)
        pk_add(a, 136, 136, 140); pk_add(a, 138, 138, 142)
        pk_add(a, 140, 128, 136); pk_add(a, 142, 130, 138)
        reduce8(a, 140)
        row_allreduce(a, [140, 144], "v_add_f32", steps=(8,))
        a(f"""
        v_mov_b32 v141, v144
        v_and_b32 v56, 1, v3
        v_lshlrev_b32 v56, 1, v56
        v_lshrrev_b32 v59, 1, v3
        v_or_b32 v56, v56, v59                ; sigma(g4)
        v_and_b32 v59, 7, v1
        v_lshl_add_u32 v56, v59, 2, v56       ; column
        v_lshlrev_b32 v56, 3, v56
        s_lshl_b32 s64, s3, 8
        v_add_u32 v56, s64, v56
        ds_write_b64 v56, v[140:141] offset:{LF}
        """)
        lds_count(F_CF, 56, 59, rtn=64)
        a(f"""
        s_cmp_lg_u32 s64, 7
        s_cbranch_scc1 L_FIN_END
        v_lshlrev_b32 v56, 2, v112
        v_mov_b32 v59, 0
        s_mov_b32 s{sIT}, 0
        """)
        for w in range(8):
            a(f"ds_read_b64 v[{64+2*w}:{65+2*w}], v56 offset:{LF + w*256}")
        a.label(F3)
        a(f"""
        ds_read_b128 v[100:103], v59 offset:{LPRE}
        s_waitcnt lgkmcnt(0)
        v_cmp_ne_u32 vcc, 1, v103
        s_cbranch_vccz {F4}
        s_add_u32 s{sIT}, s{sIT}, 1
        s_cmp_lt_u32 s{sIT}, {cfg.limit*20}
        s_cbranch_scc1 {F3}
        """)
        a.label(F4)
        tree8(a, 64, 2, 2)
        a(f"""
        v_lshlrev_b32 v113, 16, v113        ; x
        v_cvt_pk_bf16_f32 v80, v64, v65
        v_and_b32 v81, 0xffff0000, v80      ; y
        v_lshlrev_b32 v80, 16, v80          ; a
        v_mul_f32 v81, v102, v81            ; y*sr
        v_mul_f32 v80, v100, v80            ; g*a
        v_cvt_pk_bf16_f32 v80, v80, v81
        v_and_b32 v81, 0xffff0000, v80
        v_lshlrev_b32 v80, 16, v80
        v_add_f32 v81, v81, v113            ; b
        v_cvt_pk_bf16_f32 v81, v81, v81
        v_lshlrev_b32 v81, 16, v81
        v_mul_f32 v81, v101, v81            ; (1-g)*b
        v_cvt_pk_bf16_f32 v81, v81, v81
        v_lshlrev_b32 v81, 16, v81
        v_add_f32 v64, v80, v81
        v_cvt_pk_bf16_f32 v64, v64, v64
        s_mov_b64 exec, 0xffffffff
        buffer_store_short v64, v112, s[{sOUT}:{sOUT+3}], s68 offen
        s_mov_b64 exec, -1
        """)

    body(True)
    a.label("L_LIGHT")
    body(False)
    a.label("L_FIN_END")
    if cfg.prof:
        prof_at(13)
        a(f"""
        s_lshl_b32 s64, s97, 9
        s_lshl_b32 s65, s3, 6
        s_add_u32 s64, s64, s65
        s_add_u32 s64, s64, {PROFB}
        v_lshlrev_b32 v56, 2, v1
        s_mov_b64 exec, 0xffff
        buffer_store_dword v0, v56, s[{sWS}:{sWS+3}], s64 offen
        """)
    a.label("L_END")
    a("s_endpgm")

    hdr = f"""; generated: single persistent kernel (q gemv + exchange, split-K attention, FFN, combine, final)
; @launch grid=(256,1,1) block=(512,1,1) lds={LDS_TOTAL}
.amdgcn_target "amdgcn-amd-amdhsa--gfx950"
.text
"""
    tail = f""".section .rodata,"a"
.p2align 6
.amdhsa_kernel {kname}
  .amdhsa_next_free_vgpr 256
  .amdhsa_next_free_sgpr 102
  .amdhsa_accum_offset 256
  .amdhsa_group_segment_fixed_size 0
  .amdhsa_kernarg_size 112
  .amdhsa_user_sgpr_count 2
  .amdhsa_user_sgpr_kernarg_segment_ptr 1
  .amdhsa_system_sgpr_workgroup_id_x 1
.end_amdhsa_kernel
"""
    return hdr + a.text() + tail

if __name__ == "__main__":
    cfg = Cfg()
    out = "v8.s"
    for arg in sys.argv[1:]:
        if "=" in arg:
            k, v = arg.split("=")
            if k in ("nt",):
                setattr(cfg, k, " nt" if v == "1" else "")
            elif k in ("hooks",):
                setattr(cfg, k, v)
            else:
                setattr(cfg, k, int(v))
        else:
            out = arg
    open(out, "w").write(build(cfg))
    print("wrote", out)
```

```python
import sys, struct

NAME = "gated_mix__gqa_block_cached__moe_arch_mod__decode"

def f32(x):
    return "0x%08x" % struct.unpack("<I", struct.pack("<f", x))[0]

QP = 0x000000
GP = 0x020000
AML = 0x040000
AO = 0x100000
OP = 0x200000
FINB = 288 * 128
CNT = 0x060000
PROFB = 0x380000
WS_SIZE = 268435456

LOG2E = 1.4426950408889634
CSC = LOG2E * (128 ** -0.5)

LQP = 0
LGP = 2048
LDP = 4096
LQ = 8192
QS = 272
LMX = 10368
LL = 10624
LOV = 10880
LPRE = 10944
LFL = 10960
LF = 11264
LO = 13312
HS = 544
WSZ = 8 * HS
LDS_TOTAL = LO + 8 * WSZ
F_CQ, F_CG, F_TAG, F_CQ2, F_CM, F_CO, F_CD, F_CF = [LFL + 4 * i for i in range(8)]
F_CK = LFL + 32
F_CL = LFL + 64

class Cfg:
    pace = 2
    prof = 0
    nt = " nt"
    limit = 200000
    sleep = 1
    burst = 2
    qpoll = 20
    qchk = 3
    extra = 2
    hooks = "0,2,4,8"
    od = 0
    xr = 0
    plo = 1
    phi = 3
    var = 0
    xhi = 0
    xlo = 0
    ctl = 0
    cks = "8,16,24,32,40,48,56"
    ckd = 5
    ckw = 3
    t1 = 21
    t2 = 43
    t3 = 58
    wl = 1
    wh = 6
    lmax = 3
    spin = 0
    dbgt = 0
    look = 0
    base = 1

class A:
    def __init__(self):
        self.l = []
        self.vm = []
    def __call__(self, s):
        for line in s.strip("\n").split("\n"):
            line = line.strip()
            if line:
                self.l.append("    " + line)
    def label(self, s):
        self.l.append(s + ":")
    def raw(self, s):
        self.l.append(s)
    def text(self):
        return "\n".join(self.l) + "\n"
    def vmem(self, s, tag, optional=False):
        self(s)
        self.vm.append((tag, optional))
    def cnt_after(self, tag):
        idx = max(i for i, (t, o) in enumerate(self.vm) if t == tag)
        return sum(1 for (t, o) in self.vm[idx + 1:] if not o)
    def count(self, tag):
        return sum(1 for t, o in self.vm if t == tag)
    def wait_for(self, tag, extra=""):
        n = self.cnt_after(tag)
        assert n <= 63
        self(f"s_waitcnt vmcnt({n}){extra}")

def srd(a, sb, size):
    a(f"""
    s_and_b32 s{sb+1}, s{sb+1}, 0xffff
    s_mov_b32 s{sb+2}, {size}
    s_mov_b32 s{sb+3}, 0x00020000
    """)

def dpp(a, op, d, s0, s1, ctrl, bank="0xf"):
    a(f"{op}_dpp v{d}, v{s0}, v{s1} {ctrl} row_mask:0xf bank_mask:{bank}")

def row_allreduce(a, regs, op, steps=(8, 4, 2, 1)):
    for r in steps:
        a("s_nop 1")
        for v in regs:
            dpp(a, op, v, v, v, f"row_ror:{r}")

def cross_rows(a, regs, tmp, op):
    for sw in ("v_permlane16_swap_b32", "v_permlane32_swap_b32"):
        for i, v in enumerate(regs):
            a(f"v_mov_b32 v{tmp+i}, v{v}")
        a("s_nop 1")
        for i, v in enumerate(regs):
            a(f"{sw} v{v}, v{tmp+i}")
        for i, v in enumerate(regs):
            a(f"{op} v{v}, v{v}, v{tmp+i}")

def reduce8(a, acc):
    a("s_nop 1")
    for b in (0, 2, 4, 6):
        a(f"v_permlane32_swap_b32 v{acc+b}, v{acc+b+1}")
    for b in (0, 2, 4, 6):
        a(f"v_add_f32 v{acc+b}, v{acc+b}, v{acc+b+1}")
    a("s_nop 1")
    a(f"v_permlane16_swap_b32 v{acc}, v{acc+2}")
    a(f"v_permlane16_swap_b32 v{acc+4}, v{acc+6}")
    a(f"v_add_f32 v{acc}, v{acc}, v{acc+2}")
    a(f"v_add_f32 v{acc+4}, v{acc+4}, v{acc+6}")

def gemv_rows(a, nrows, wbase, xp, acc, t0, t1, slot=None, first=0):
    if first == 0:
        for r in range(8):
            a(f"v_mov_b32 v{acc+r}, 0")
    for i in range(first, nrows):
        xr = xp + i // 2
        if i % 2 == 0:
            a(f"v_and_b32 v{t0}, 0xffff, v{xr}")
            a(f"v_lshlrev_b32 v{t1}, 16, v{xr}")
        else:
            a(f"v_lshrrev_b32 v{t0}, 16, v{xr}")
            a(f"v_and_b32 v{t1}, 0xffff0000, v{xr}")
        for d in range(4):
            a(f"v_dot2c_f32_bf16 v{acc+2*d}, v{wbase+4*i+d}, v{t0}")
            a(f"v_dot2c_f32_bf16 v{acc+2*d+1}, v{wbase+4*i+d}, v{t1}")
        if slot is not None and i % 2 == 1:
            slot()

def pk_add(a, d, s0, s1):
    a(f"v_pk_add_f32 v[{d}:{d+1}], v[{s0}:{s0+1}], v[{s1}:{s1+1}]")

def tree8(a, base, stride, n):
    for st in (1, 2, 4):
        for w in range(0, 8, 2 * st):
            for k in range(0, n, 2):
                pk_add(a, base + w * stride + k, base + w * stride + k, base + (w + st) * stride + k)

SR = 16
DR = 32
QR = 48
VR0, KR = 64, 128
VR1, OR_, TR, PR = 128, 192, 224, 240
WDR, WOR = 16, 32
GR, XG = 64, 96
TB = 12
HR = 62
vZ = 57
sK, sV, sWS, sX, sWQ, sGU, sDBG, sOUT, sWR, sGW = 4, 8, 12, 16, 20, 24, 28, 32, 36, 40
sWO, sWD = 84, 88
sG, sJ = 44, 45
sPUB = 46
sTAG = 47
sT = 48
sWQS, sXQS, sGUS, sGUX = 56, 57, 58, 59
sWOS, sWDS = 60, 62
sPA, sPB = 72, 73
sMA = 74
sIT = 76
sMSK = 77
sMB = 78
sPOL = 80
sONE = 81
sQPL, sHPL = 82, 83
sQPUB, sGPUB = 92, 93
sMC = 94
sCAND = 96
sU, sISQ, sHF, sHPM = 98, 99, 100, 101

def build(cfg):
    a = A()
    NT = cfg.nt
    P = cfg.pace
    PH = cfg.phi if cfg.var else P
    if cfg.ctl:
        PH = cfg.base + cfg.look
    kname = NAME + "_kernel"
    uid = [0]
    def lab(p):
        uid[0] += 1
        return f"L_{p}{uid[0]}"
    def prof_at(i):
        if cfg.prof:
            a(f"""
            s_memrealtime s[70:71]
            s_waitcnt lgkmcnt(0)
            v_writelane_b32 v0, s70, {i}
            """)

    def dbg_at(i, t=116):
        if cfg.dbgt:
            a(f"""
            s_memrealtime s[70:71]
            s_waitcnt lgkmcnt(0)
            s_sub_u32 s70, s70, s{sTAG}
            v_mov_b32 v{t}, s70
            s_mov_b64 exec, 1
            buffer_atomic_umax v{t}, off, s[{sDBG}:{sDBG+3}], 0 offset:{4*i} sc1
            s_mov_b64 exec, -1
            """)
    a.raw(f".globl {kname}")
    a.raw(".p2align 8")
    a.raw(f".type {kname},@function")
    a.label(kname)
    a(f"""
    s_cmp_ge_u32 s2, 256
    s_cbranch_scc1 L_END
    s_mov_b32 s97, s2
    s_xor_b32 s2, s2, {cfg.xr}
    s_load_dwordx2 s[{sX}:{sX+1}], s[0:1], 0
    s_load_dwordx2 s[{sWQ}:{sWQ+1}], s[0:1], 24
    s_load_dwordx2 s[{sDBG}:{sDBG+1}], s[0:1], 96
    s_load_dwordx2 s[{sGU}:{sGU+1}], s[0:1], 56
    s_load_dwordx2 s[68:69], s[0:1], 64
    s_load_dwordx2 s[{sK}:{sK+1}], s[0:1], 8
    s_load_dwordx2 s[{sV}:{sV+1}], s[0:1], 16
    s_load_dwordx2 s[{sWS}:{sWS+1}], s[0:1], 104
    s_load_dwordx2 s[{sWO}:{sWO+1}], s[0:1], 32
    s_load_dwordx2 s[{sWD}:{sWD+1}], s[0:1], 72
    s_load_dwordx2 s[{sOUT}:{sOUT+1}], s[0:1], 88
    s_load_dwordx2 s[{sWR}:{sWR+1}], s[0:1], 48
    s_load_dwordx2 s[{sGW}:{sGW+1}], s[0:1], 80
    s_memrealtime s[70:71]
    v_and_b32 v1, 63, v0
    v_lshrrev_b32 v2, 6, v0
    v_lshrrev_b32 v3, 4, v1       ; g4
    v_and_b32 v4, 15, v1          ; c16
    v_mov_b32 v0, 0
    v_readfirstlane_b32 s3, v2
    s_lshr_b32 s{sG}, s2, 6
    s_and_b32 s{sJ}, s2, 63
    v_bfe_u32 v5, v1, 2, 2
    v_lshlrev_b32 v5, 10, v5
    v_bfe_u32 v8, v1, 1, 1
    v_lshl_add_u32 v5, v8, 8, v5
    v_lshl_add_u32 v5, v3, 5, v5
    v_and_b32 v8, 1, v1
    v_lshl_add_u32 v5, v8, 4, v5
    v_lshlrev_b32 v6, 10, v3
    v_lshl_add_u32 v6, v4, 4, v6  ; V voffset
    s_lshl_b32 s{sT}, s2, 18
    s_lshl_b32 s64, s3, 12
    s_add_u32 s{sT}, s{sT}, s64
    """)
    for t in range(1, 8):
        a(f"s_add_u32 s{sT+t}, s{sT}, {t*32768}")
    a(f"""
    v_lshrrev_b32 v56, 3, v1            ; r8
    v_and_b32 v58, 7, v1                ; pc
    v_lshlrev_b32 v10, 15, v56
    v_lshl_add_u32 v10, v58, 4, v10
    v_lshlrev_b32 v11, 3, v56           ; x voffset
    v_mul_u32_u24 v60, 28672, v56
    v_lshl_add_u32 v60, v58, 4, v60
    s_bfe_u32 s{sIT}, s2, 0x30003
    s_bfe_u32 s64, s2, 0x10002
    s_lshl_b32 s64, s64, 3
    s_add_u32 s64, s64, s{sIT}          ; cbq
    s_and_b32 s65, s{sJ}, 3             ; ks
    s_lshl_b32 s66, s65, 8
    s_lshl_b32 s67, s3, 5
    s_add_u32 s66, s66, s67             ; row0
    s_lshl_b32 s{sXQS}, s66, 1
    s_lshl_b32 s{sWQS}, s66, 13
    s_lshl_b32 s67, s{sG}, 11
    s_add_u32 s{sWQS}, s{sWQS}, s67
    s_lshl_b32 s67, s64, 7
    s_add_u32 s{sWQS}, s{sWQS}, s67
    s_lshl_b32 s{sQPL}, s{sG}, 14       ; QP + G*16384
    s_lshr_b32 s67, s64, 1
    s_lshl_b32 s67, s67, 11
    s_add_u32 s{sQPUB}, s{sQPL}, s67
    s_lshl_b32 s67, s65, 9
    s_add_u32 s{sQPUB}, s{sQPUB}, s67
    s_and_b32 s67, s64, 1
    s_lshl_b32 s67, s67, 8
    s_add_u32 s{sQPUB}, s{sQPUB}, s67
    s_lshl_b32 s67, s3, 11
    s_add_u32 s{sQPL}, s{sQPL}, s67
    v_and_b32 v9, 1, v3
    v_lshlrev_b32 v9, 1, v9
    v_lshrrev_b32 v8, 1, v3
    v_or_b32 v9, v9, v8                 ; sigma(g4)
    v_bfe_u32 v8, v1, 3, 1
    v_lshl_add_u32 v9, v8, 2, v9
    v_lshl_add_u32 v9, v58, 3, v9
    v_lshlrev_b32 v9, 2, v9
    v_lshl_add_u32 v7, v2, 8, v9
    s_cmp_gt_u32 s{sIT}, 3
    s_cselect_b32 s65, 1, 0
    s_sub_u32 s65, s{sIT}, s65          ; r'
    s_lshl_b32 s65, s65, 3
    s_mul_i32 s{sU}, s{sG}, 56
    s_add_u32 s{sU}, s{sU}, s65
    s_and_b32 s65, s2, 7
    s_add_u32 s{sU}, s{sU}, s65         ; u
    s_lshl_b32 s66, s{sG}, 3
    s_add_u32 s66, s66, s65             ; f
    s_sub_u32 s67, s{sU}, 196
    s_cmp_ge_u32 s{sU}, 196
    s_cselect_b32 s{sISQ}, 1, 0
    s_add_u32 s65, s66, 28
    s_cmp_eq_u32 s{sIT}, 3
    s_cselect_b32 s67, s65, s67         ; qn
    s_cselect_b32 s{sISQ}, 1, s{sISQ}
    s_cselect_b32 s{sU}, s66, s{sU}     ; u or f
    s_cmp_lg_u32 s{sISQ}, 0
    s_cbranch_scc1 L_GQ
    s_lshr_b32 s64, s{sU}, 2            ; nb
    s_mul_i32 s65, s64, 37
    s_lshr_b32 s65, s65, 8              ; c7
    s_mul_i32 s66, s65, 7
    s_sub_u32 s64, s64, s66             ; rr
    s_cmp_ge_u32 s64, 3
    s_addc_u32 s64, s64, 0
    s_lshl_b32 s65, s65, 3
    s_add_u32 s64, s64, s65             ; cblock
    s_bfe_u32 s{sHF}, s{sU}, 0x10001    ; mat
    s_and_b32 s66, s{sU}, 1             ; part
    s_lshl_b32 s65, s66, 9
    s_lshl_b32 s67, s3, 6
    s_add_u32 s65, s65, s67             ; row0
    s_mov_b32 s67, 0
    s_branch L_GC
L_GQ:
    s_min_u32 s66, s67, 55
    s_lshr_b32 s64, s66, 3
    s_lshl_b32 s64, s64, 3
    s_add_u32 s64, s64, 3               ; cblock
    s_bfe_u32 s{sHF}, s66, 0x10002      ; mat
    s_and_b32 s66, s66, 3               ; part
    s_lshl_b32 s65, s66, 8
    s_lshl_b32 s{sHPM}, s3, 5
    s_add_u32 s65, s65, s{sHPM}         ; row0
L_GC:
    s_lshl_b32 s{sGUX}, s65, 1
    s_mul_i32 s{sGUS}, s65, 7168
    s_lshl_b32 s65, s64, 7
    s_add_u32 s{sGUS}, s{sGUS}, s65
    s_lshl_b32 s{sGPUB}, s64, 11
    s_lshl_b32 s65, s{sHF}, 10
    s_add_u32 s{sGPUB}, s{sGPUB}, s65
    s_lshl_b32 s65, s66, 8
    s_add_u32 s{sGPUB}, s{sGPUB}, s65
    s_lshl_b32 s65, s67, 8
    s_add_u32 s65, s65, {56*2048 - 56*256}
    s_cmp_ge_u32 s67, 56
    s_cselect_b32 s{sGPUB}, s65, s{sGPUB}
    s_add_u32 s{sGPUB}, s{sGPUB}, {GP}
    s_mov_b32 s{sPOL}, s{sHF}
    s_and_b32 s64, s{sU}, 0xf8
    s_add_u32 s64, s64, s3
    s_lshl_b32 s{sWDS}, s64, 15
    s_and_b32 s65, s{sU}, 7
    s_lshl_b32 s65, s65, 8
    s_add_u32 s{sWDS}, s{sWDS}, s65
    s_add_u32 s{sWDS+1}, s{sWDS}, 4096
    s_lshr_b32 s65, s64, 2
    s_lshl_b32 s{sHPL}, s65, 11
    s_and_b32 s65, s65, 7
    s_cmp_eq_u32 s65, 3
    s_cselect_b32 s{sHF}, 1.0, 0.5
    s_cselect_b32 s{sHPM}, 3, 1
    s_and_b32 s65, s64, 3
    s_lshl_b32 s65, s65, 6
    s_add_u32 s{sHPL}, s{sHPL}, s65
    s_add_u32 s{sHPL}, s{sHPL}, {GP}
    s_lshl_b32 s{sWOS}, s2, 15
    s_lshl_b32 s65, s3, 8
    s_add_u32 s{sWOS}, s{sWOS}, s65
    s_add_u32 s{sWOS+1}, s{sWOS}, 4096
    s_mov_b32 s{sMSK}, 0xffffff00
    s_mov_b32 s{sPA}, 0x05040100
    s_mov_b32 s{sPB}, 0x07060302
    s_mov_b32 s{sONE}, 0x3f803f80
    s_mov_b32 s{sPUB}, 0
    s_mov_b32 s{sTAG}, 0
    s_mov_b32 s{sCAND}, 0
    s_waitcnt lgkmcnt(0)
    s_and_b32 s64, s97, 7
    s_lshr_b32 s65, {cfg.xhi}, s64
    s_and_b32 s65, s65, 1
    s_lshr_b32 s64, {cfg.xlo}, s64
    s_and_b32 s64, s64, 1
    s_add_u32 s0, s65, {(cfg.pace - cfg.base) if cfg.ctl else 1}
    s_sub_u32 s0, s0, s64
    s_mov_b32 s1, 4
    s_cmp_eq_u32 s{sPOL}, 0
    s_cbranch_scc1 L_GSEL
    s_mov_b64 s[{sGU}:{sGU+1}], s[68:69]
    """)
    a.label("L_GSEL")
    srd(a, sX, 2048)
    srd(a, sWQ, 0x800000)
    srd(a, sDBG, 256)
    srd(a, sGU, 0x700000)
    srd(a, sK, 0x4000000)
    srd(a, sV, 0x4000000)
    srd(a, sWS, WS_SIZE)
    srd(a, sWO, 0x800000)
    srd(a, sWD, 0x700000)
    srd(a, sOUT, 2048)
    srd(a, sWR, 2048)
    srd(a, sGW, 2048)
    if cfg.prof:
        a("v_writelane_b32 v0, s70, 0")
    a(f"""
    s_cmp_lg_u32 s3, 0
    s_cbranch_scc1 L_NOT0
    s_cmp_eq_u32 s2, 0
    s_cbranch_scc0 L_W0_T1
    s_or_b32 s{sCAND}, s70, 1
    v_mov_b32 v58, s{sCAND}
    v_mov_b32 v59, 0
    s_mov_b64 exec, 1
    buffer_atomic_cmpswap v[58:59], off, s[{sDBG}:{sDBG+3}], 0 sc0 sc1
    s_mov_b64 exec, -1
    s_branch L_W0_T2
    """)
    a.label("L_W0_T1")
    a(f"buffer_load_dword v58, off, s[{sDBG}:{sDBG+3}], 0 sc1")
    a.label("L_W0_T2")
    a(f"""
    v_mov_b32 v56, 0
    v_lshlrev_b32 v57, 2, v1
    ds_write_b32 v57, v56 offset:{LOV}
    """)
    a.label("L_NOT0")
    if cfg.ctl:
        a(f"""
        s_cmp_lg_u32 s2, 0
        s_cbranch_scc1 L_NCI
        s_cmp_lg_u32 s3, 1
        s_cbranch_scc1 L_NCI
        v_lshlrev_b32 v57, 7, v1
        v_mov_b32 v56, 0
        s_mov_b32 s64, {CNT}
        s_mov_b64 exec, 0xffffffff
        buffer_store_dword v56, v57, s[{sWS}:{sWS+3}], s64 offen sc1
        s_mov_b64 exec, -1
        """)
        a.label("L_NCI")
    a.vm = [("tag", True)]
    a.vmem(f"buffer_load_dwordx2 v[8:9], v11, s[{sX}:{sX+3}], s{sXQS} offen", "xq")
    for i in range(4):
        a.vmem(f"buffer_load_dwordx4 v[{16+4*i}:{19+4*i}], v10, s[{sWQ}:{sWQ+3}], s{sWQS} offen{NT}", "wq")
        if i < 3:
            a(f"s_add_u32 s{sWQS}, s{sWQS}, 8192")
    a(f"""
    s_cmp_eq_u32 s{sIT}, 3
    s_cbranch_scc1 L_LIGHT
    """)
    vm0 = list(a.vm)

    def body(heavy):
        a.vm = list(vm0)
        st = {"qk": False, "pv": -1, "sm": False}
        def ld_xg():
            a.vmem(f"buffer_load_dwordx2 v[{XG}:{XG+1}], v11, s[{sX}:{sX+3}], s{sGUX} offen", "g")
        def ld_g(i):
            a.vmem(f"buffer_load_dwordx4 v[{GR+4*i}:{GR+4*i+3}], v60, s[{sGU}:{sGU+3}], s{sGUS} offen{NT}", "g")
            if i < 3:
                a(f"s_add_u32 s{sGUS}, s{sGUS}, 7168")
        def ld_g2():
            L = lab("G2")
            a(f"""
            s_cmp_lg_u32 s{sISQ}, 0
            s_cbranch_scc1 {L}
            s_add_u32 s{sGUS}, s{sGUS}, {29*7168}
            """)
            a.vmem(f"buffer_load_dwordx2 v[{XG+2}:{XG+3}], v11, s[{sX}:{sX+3}], s{sGUX} offen offset:64", "g", optional=True)
            for i in range(4, 8):
                if i > 4:
                    a(f"s_waitcnt vmcnt({P})")
                a.vmem(f"buffer_load_dwordx4 v[{GR+4*i}:{GR+4*i+3}], v60, s[{sGU}:{sGU+3}], s{sGUS} offen{NT}", "g", optional=True)
                if i < 7:
                    a(f"s_add_u32 s{sGUS}, s{sGUS}, 7168")
            a.label(L)
        def ld_k(n):
            t, j = n >> 2, n & 3
            r = KR + n * 4
            a.vmem(f"buffer_load_dwordx4 v[{r}:{r+3}], v5, s[{sK}:{sK+3}], s{sT+t} offen offset:{(j&1)*128+(j>>1)*512}{NT}", f"k{t}")
            for h in khooks.get(n, []):
                h()
            post(n)
        def ld_v(G, i):
            if G >= 2:
                assert st["qk"]
            base = (VR0 + G * 32) if G < 2 else (VR1 + (G - 2) * 32)
            r = base + i * 4
            a.vmem(f"buffer_load_dwordx4 v[{r}:{r+3}], v6, s[{sV}:{sV+3}], s{sT+2*G+(i>>2)} offen offset:{(i&3)*256}{NT}", f"v{G}")
            post(32 + 8 * G + i)
        cks = [int(x) for x in cfg.cks.split(",")] if cfg.ctl else []
        def level():
            a(f"""
            s_mov_b32 s0, {P - cfg.base + 2}
            s_cmp_le_u32 s64, {cfg.t1}
            s_cselect_b32 s65, 1, 0
            s_cmp_eq_u32 s64, 0
            s_cselect_b32 s65, 0, s65
            s_sub_u32 s0, s0, s65
            s_cmp_gt_u32 s64, {cfg.t2}
            s_addc_u32 s0, s0, 0
            s_cmp_gt_u32 s64, {cfg.t3}
            s_addc_u32 s0, s0, 0
            s_cmp_ge_u32 s1, {cfg.wh}
            s_addc_u32 s0, s0, 0
            s_cmp_le_i32 s1, {cfg.wl}
            s_subb_u32 s0, s0, 0
            s_max_u32 s0, s0, 2
            s_sub_u32 s0, s0, 2
            s_min_u32 s0, s0, {cfg.lmax}
            """)
        def post(idx):
            if not cks:
                return
            if idx in cks:
                assert vstate["on"]
                k = cks.index(idx)
                L = lab("CK")
                a(f"""
                v_mov_b32 v7, 1
                s_mov_b64 exec, 1
                ds_add_rtn_u32 v7, v1, v7 offset:{F_CK + 4*k}
                ds_read_b32 v57, v1 offset:{F_CL}
                s_waitcnt lgkmcnt(0)
                v_readfirstlane_b32 s1, v7
                v_readfirstlane_b32 s64, v57
                v_mov_b32 v57, 1
                s_lshl_b32 s65, s{sG}, 7
                s_add_u32 s65, s65, {CNT + k*512}
                s_cmp_lg_u32 s1, {cfg.ckw}
                s_cbranch_scc1 {L}
                """)
                a.vmem(f"buffer_atomic_add v57, off, s[{sWS}:{sWS+3}], s65 sc0 sc1", "ck", optional=True)
                a.label(L)
                a("s_mov_b64 exec, -1")
                level()
            elif idx - cfg.ckd in cks:
                L = lab("CP")
                a(f"""
                s_cmp_lg_u32 s1, {cfg.ckw}
                s_cbranch_scc1 {L}
                """)
                a.wait_for("ck")
                a(f"""
                v_add_u32 v57, 1, v57
                s_mov_b64 exec, 1
                ds_write_b32 v1, v57 offset:{F_CL}
                s_mov_b64 exec, -1
                """)
                a.label(L)
            elif idx > cks[0] + cfg.ckd and any((idx - cfg.ckd - d) in cks for d in (1, 2)):
                a(f"""
                s_mov_b64 exec, 1
                ds_read_b32 v7, v1 offset:{F_CL}
                s_mov_b64 exec, -1
                s_waitcnt lgkmcnt(0)
                v_readfirstlane_b32 s64, v7
                """)
                level()
        def ld_wo(i):
            assert st["qk"]
            a.vmem(f"buffer_load_dwordx4 v[{WOR+4*i}:{WOR+4*i+3}], v2, s[{sWO}:{sWO+3}], s{sWOS+(i>>1)} offen offset:{(i&1)*2048}{NT}", "wo")
        def ld_wd(i):
            assert st["sm"]
            a.vmem(f"buffer_load_dwordx4 v[{WDR+4*i}:{WDR+4*i+3}], v2, s[{sWD}:{sWD+3}], s{sWDS+(i>>1)} offen offset:{(i&1)*2048}{NT}", "wd")
        stream = []
        vstate = {"on": False}
        def slot(n=1, paced=True):
            for _ in range(n):
                if stream:
                    fn, args = stream.pop(0)
                    if paced and cfg.ctl and vstate["on"]:
                        GO = lab("GO")
                        for lv in range(cfg.lmax, 0, -1):
                            a(f"""
                            s_waitcnt vmcnt({cfg.base + lv})
                            s_cmp_ge_u32 s0, {lv}
                            s_cbranch_scc1 {GO}
                            """)
                        a(f"s_waitcnt vmcnt({cfg.base})")
                        a.label(GO)
                    elif paced and cfg.var and vstate["on"]:
                        GO = lab("GO")
                        a(f"""
                        s_waitcnt vmcnt({cfg.phi})
                        s_cmp_eq_u32 s0, 2
                        s_cbranch_scc1 {GO}
                        s_waitcnt vmcnt({P})
                        s_cmp_eq_u32 s0, 1
                        s_cbranch_scc1 {GO}
                        s_waitcnt vmcnt({cfg.plo})
                        """)
                        a.label(GO)
                    elif paced:
                        a(f"s_waitcnt vmcnt({P})")
                    fn(*args)
        def fill(tag, n):
            while stream and (a.count(tag) < n or a.cnt_after(tag) < (PH if vstate["on"] else P) + 1):
                slot()
        def lds_count(flag, t0, t1, rtn=None):
            a(f"""
            v_mov_b32 v{t0}, 0
            v_mov_b32 v{t1}, 1
            s_waitcnt lgkmcnt(0)
            s_mov_b64 exec, 1
            """)
            if rtn is None:
                a(f"ds_add_u32 v{t0}, v{t1} offset:{flag}")
                a("s_mov_b64 exec, -1")
            else:
                a(f"""
                ds_add_rtn_u32 v{t1}, v{t0}, v{t1} offset:{flag}
                s_mov_b64 exec, -1
                s_waitcnt lgkmcnt(0)
                v_readfirstlane_b32 s{rtn}, v{t1}
                """)
        def lds_spin(flag, cond, val, dst, t0, t1):
            L, D = lab("SP"), lab("SPD")
            a(f"""
            v_mov_b32 v{t0}, 0
            s_mov_b32 s{sIT}, 0
            """)
            a.label(L)
            a(f"""
            ds_read_b32 v{t1}, v{t0} offset:{flag}
            s_waitcnt lgkmcnt(0)
            v_readfirstlane_b32 s{dst}, v{t1}
            s_cmp_{cond}_u32 s{dst}, {val}
            s_cbranch_scc1 {D}
            s_sleep 1
            s_add_u32 s{sIT}, s{sIT}, 1
            s_cmp_lt_u32 s{sIT}, {cfg.limit*20}
            s_cbranch_scc1 {L}
            """)
            a.label(D)
        def tag_bytes():
            a(f"""
            v_mov_b32 v{TB+3}, s{sTAG}
            v_and_b32 v{TB}, 0xff, v{TB+3}
            v_bfe_u32 v{TB+1}, v{TB+3}, 8, 8
            v_bfe_u32 v{TB+2}, v{TB+3}, 16, 8
            v_lshrrev_b32 v{TB+3}, 24, v{TB+3}
            """)
        def xor_check(regs4, t):
            first = True
            for b in regs4:
                for k in range(4):
                    a(f"v_xor_b32 v{b+k}, v{TB+k}, v{b+k}")
            for b in regs4:
                if first:
                    a(f"v_or3_b32 v{t}, v{b}, v{b+1}, v{b+2}")
                    a(f"v_or_b32 v{t}, v{t}, v{b+3}")
                    first = False
                else:
                    a(f"v_or3_b32 v{t}, v{t}, v{b}, v{b+1}")
                    a(f"v_or3_b32 v{t}, v{t}, v{b+2}, v{b+3}")
            a(f"v_and_b32 v{t}, 0xff, v{t}")
        def partial64(acc, base, t):
            reduce8(a, acc)
            row_allreduce(a, [acc, acc + 4], "v_add_f32", steps=(8,))
            a(f"""
            v_and_b32 v{t}, 8, v1
            v_cmp_ne_u32 vcc, 0, v{t}
            s_nop 1
            v_cndmask_b32 v{acc}, v{acc}, v{acc+4}, vcc
            ds_write_b32 v7, v{acc} offset:{base}
            """)
        def w0_hook(final):
            S, H, R, GOT, R2 = lab("HS"), lab("HH"), lab("HR"), lab("HG"), lab("HQ")
            a(f"""
            s_cmp_lg_u32 s3, 0
            s_cbranch_scc1 {S}
            s_cmp_lg_u32 s{sPUB}, 0
            s_cbranch_scc1 {S}
            s_mov_b32 s{sIT}, 0
            s_cmp_lg_u32 s{sTAG}, 0
            s_cbranch_scc1 {H}
            """)
            a.wait_for("tag")
            a.label(R)
            a(f"""
            v_readfirstlane_b32 s{sTAG}, v58
            s_cmp_eq_u32 s{sTAG}, 0
            s_cselect_b32 s{sTAG}, s{sCAND}, s{sTAG}
            s_cmp_lg_u32 s{sTAG}, 0
            s_cbranch_scc1 {GOT}
            """)
            a.vmem(f"buffer_load_dword v58, off, s[{sDBG}:{sDBG+3}], 0 sc1", "tag", optional=True)
            if final:
                a(f"""
                s_waitcnt vmcnt(0)
                s_add_u32 s{sIT}, s{sIT}, 1
                s_cmp_lt_u32 s{sIT}, {cfg.limit}
                s_cbranch_scc1 {R}
                s_mov_b32 s{sTAG}, 1
                """)
            else:
                a(f"s_branch {S}")
            a.label(GOT)
            a(f"""
            v_mov_b32 v56, 0
            v_mov_b32 v59, s{sTAG}
            ds_write_b32 v56, v59 offset:{F_TAG}
            """)
            a.label(H)
            a("v_mov_b32 v56, 0")
            a.label(R2)
            a(f"""
            ds_read_b64 v[96:97], v56 offset:{F_CQ}
            s_waitcnt lgkmcnt(0)
            v_readfirstlane_b32 s64, v96
            v_readfirstlane_b32 s65, v97
            s_add_u32 s64, s64, s65
            s_cmp_eq_u32 s64, 16
            """)
            if final:
                OKL = lab("HO")
                a(f"""
                s_cbranch_scc1 {OKL}
                s_add_u32 s{sIT}, s{sIT}, 1
                s_cmp_lt_u32 s{sIT}, {cfg.limit*20}
                s_cbranch_scc1 {R2}
                """)
                a.label(OKL)
            else:
                a(f"s_cbranch_scc0 {S}")
            a(f"""
            v_and_b32 v56, 1, v3
            v_lshlrev_b32 v59, 11, v56
            v_lshl_add_u32 v59, v4, 4, v59
            """)
            for w in range(8):
                a(f"ds_read_b128 v[{64+4*w}:{67+4*w}], v59 offset:{LQP + w*256}")
            tag_bytes()
            a(f"""
            v_mov_b32 v59, s{sQPUB}
            v_mov_b32 v96, s{sGPUB}
            v_cmp_ne_u32 vcc, 0, v56
            s_nop 1
            v_cndmask_b32 v59, v59, v96, vcc
            v_lshl_add_u32 v59, v4, 4, v59
            s_waitcnt lgkmcnt(0)
            """)
            tree8(a, 64, 4, 4)
            for k in range(4):
                a(f"v_bfi_b32 v{64+k}, s{sMSK}, v{64+k}, v{TB+k}")
            a("s_mov_b64 exec, 0xffffffff")
            a.vmem(f"buffer_store_dwordx4 v[64:67], v59, s[{sWS}:{sWS+3}], 0 offen sc1", "pub", optional=True)
            a(f"""
            s_mov_b64 exec, -1
            s_mov_b32 s{sPUB}, 1
            """)
            a.label(S)
        def q_poll_issue():
            a("v_lshlrev_b32 v10, 4, v1")
            a.vmem(f"buffer_load_dwordx4 v[32:35], v10, s[{sWS}:{sWS+3}], s{sQPL} offen sc1", "qp")
            a.vmem(f"buffer_load_dwordx4 v[36:39], v10, s[{sWS}:{sWS+3}], s{sQPL} offen offset:1024 sc1", "qp")
            if heavy:
                a(f"""
                v_and_b32 v11, s{sHPM}, v1
                v_lshlrev_b32 v11, 8, v11
                v_bfe_u32 v56, v1, 2, 1
                v_lshl_add_u32 v11, v56, 10, v11
                v_lshl_add_u32 v11, v3, 4, v11
                """)
                a.vmem(f"buffer_load_dwordx4 v[40:43], v11, s[{sWS}:{sWS+3}], s{sHPL} offen sc1", "qp")
        def q_poll_check():
            regs = [32, 36] + ([40] if heavy else [])
            lds_spin(F_TAG, "lg", 0, sTAG, 56, 59)
            tag_bytes()
            a.wait_for("qp")
            L, D = lab("QL"), lab("QD")
            a(f"s_mov_b32 s{sIT}, 0")
            a.label(L)
            xor_check(regs, 56)
            a(f"""
            v_cmp_ne_u32 vcc, 0, v56
            s_mov_b64 exec, -1
            s_cbranch_vccz {D}
            s_add_u32 s{sIT}, s{sIT}, 1
            s_cmp_lt_u32 s{sIT}, {cfg.limit}
            s_cbranch_scc0 {D}
            s_sleep {cfg.sleep}
            s_mov_b64 exec, vcc
            buffer_load_dwordx4 v[32:35], v10, s[{sWS}:{sWS+3}], s{sQPL} offen sc1
            buffer_load_dwordx4 v[36:39], v10, s[{sWS}:{sWS+3}], s{sQPL} offen offset:1024 sc1
            """)
            if heavy:
                a(f"buffer_load_dwordx4 v[40:43], v11, s[{sWS}:{sWS+3}], s{sHPL} offen sc1")
            a(f"""
            s_waitcnt vmcnt(0)
            s_branch {L}
            """)
            a.label(D)
            pk_add(a, 32, 32, 36)
            pk_add(a, 34, 34, 38)
            for k in range(4):
                a(f"v_mov_b32 v{36+k}, v{32+k}")
            a("s_nop 1")
            for k in range(4):
                a(f"v_permlane32_swap_b32 v{32+k}, v{36+k}")
            a(f"""
            v_add_f32 v32, v32, v36
            v_add_f32 v33, v33, v37
            v_add_f32 v34, v34, v38
            v_add_f32 v35, v35, v39
            v_cvt_pk_bf16_f32 v32, v32, v33
            v_cvt_pk_bf16_f32 v33, v34, v35
            v_and_b32 v56, 31, v1
            v_lshlrev_b32 v56, 3, v56
            s_mul_i32 s64, s3, {QS}
            v_add_u32 v56, s64, v56
            ds_write_b64 v56, v[32:33] offset:{LQ}
            """)
            lds_count(F_CQ2, 56, 59)
            prof_at(2)
            if heavy:
                a("s_nop 1")
                for k in range(4):
                    dpp(a, "v_add_f32", 40 + k, 40 + k, 40 + k, "quad_perm:[1,0,3,2]")
                a("s_nop 1")
                for k in range(4):
                    dpp(a, "v_add_f32", 40 + k, 40 + k, 40 + k, "quad_perm:[2,3,0,1]")
                for k in range(4):
                    a(f"v_mul_f32 v{40+k}, s{sHF}, v{40+k}")
                a(f"""
                v_and_b32 v56, 4, v1
                v_cmp_ne_u32 vcc, 0, v56
                """)
                for k in range(4):
                    a(f"v_mov_b32_dpp v{44+k}, v{40+k} row_half_mirror row_mask:0xf bank_mask:0xf")
                for k in range(4):
                    a(f"v_cndmask_b32 v{32+k}, v{40+k}, v{44+k}, vcc")
                for k in range(4):
                    a(f"v_cndmask_b32 v{44+k}, v{44+k}, v{40+k}, vcc")
                a(f"""
                v_cvt_pk_bf16_f32 v32, v32, v33
                v_cvt_pk_bf16_f32 v33, v34, v35
                v_cvt_pk_bf16_f32 v44, v44, v45
                v_cvt_pk_bf16_f32 v45, v46, v47
                v_lshlrev_b32 v36, 16, v32
                v_and_b32 v37, 0xffff0000, v32
                v_lshlrev_b32 v38, 16, v33
                v_and_b32 v39, 0xffff0000, v33
                """)
                for k in range(4):
                    a(f"v_mul_f32 v{40+k}, {f32(-LOG2E)}, v{36+k}")
                for k in range(4):
                    a(f"v_exp_f32 v{40+k}, v{40+k}")
                a("s_nop 0")
                for k in range(4):
                    a(f"v_add_f32 v{40+k}, 1.0, v{40+k}")
                for k in range(4):
                    a(f"v_rcp_f32 v{40+k}, v{40+k}")
                a("s_nop 0")
                for k in range(4):
                    a(f"v_mul_f32 v{36+k}, v{36+k}, v{40+k}")
                a(f"""
                v_cvt_pk_bf16_f32 v32, v36, v37
                v_cvt_pk_bf16_f32 v33, v38, v39
                v_lshlrev_b32 v36, 16, v32
                v_and_b32 v37, 0xffff0000, v32
                v_lshlrev_b32 v38, 16, v33
                v_and_b32 v39, 0xffff0000, v33
                v_lshlrev_b32 v40, 16, v44
                v_and_b32 v41, 0xffff0000, v44
                v_lshlrev_b32 v42, 16, v45
                v_and_b32 v43, 0xffff0000, v45
                """)
                for k in range(4):
                    a(f"v_mul_f32 v{36+k}, v{36+k}, v{40+k}")
                a(f"""
                v_cvt_pk_bf16_f32 v{HR}, v36, v37
                v_cvt_pk_bf16_f32 v{HR+1}, v38, v39
                """)
        PRE = 100
        def pre_issue():
            L = lab("PI")
            a(f"""
            s_cmp_lg_u32 s3, 0
            s_cbranch_scc1 {L}
            v_lshlrev_b32 v56, 5, v1
            """)
            for k, sr in enumerate((sX, sWR, sGW)):
                a.vmem(f"buffer_load_dwordx4 v[{PRE+8*k}:{PRE+8*k+3}], v56, s[{sr}:{sr+3}], 0 offen", "pre", optional=True)
                a.vmem(f"buffer_load_dwordx4 v[{PRE+8*k+4}:{PRE+8*k+7}], v56, s[{sr}:{sr+3}], 0 offen offset:16", "pre", optional=True)
            a.label(L)
        def prelude():
            L = lab("PC")
            X, W, Gw = PRE, PRE + 8, PRE + 16
            a(f"""
            s_cmp_lg_u32 s3, 0
            s_cbranch_scc1 {L}
            """)
            a.wait_for("pre")
            a(f"""
            v_mov_b32 v64, 0
            v_mov_b32 v65, 0
            """)
            for d in range(8):
                a(f"v_dot2c_f32_bf16 v64, v{X+d}, v{W+d}")
            for d in range(8):
                a(f"""
                v_lshlrev_b32 v66, 16, v{X+d}
                v_and_b32 v67, 0xffff0000, v{X+d}
                v_lshlrev_b32 v68, 16, v{Gw+d}
                v_and_b32 v69, 0xffff0000, v{Gw+d}
                v_mul_f32 v66, v66, v68
                v_mul_f32 v67, v67, v69
                v_cvt_pk_bf16_f32 v66, v66, v67
                v_lshlrev_b32 v67, 16, v66
                v_and_b32 v66, 0xffff0000, v66
                v_add_f32 v65, v65, v66
                v_add_f32 v65, v65, v67
                """)
            row_allreduce(a, [64, 65], "v_add_f32")
            cross_rows(a, [64, 65], 66, "v_add_f32")
            a(f"""
            v_cvt_pk_bf16_f32 v64, v64, v65
            v_and_b32 v65, 0xffff0000, v64
            v_lshlrev_b32 v64, 16, v64
            v_mul_f32 v64, {f32(-LOG2E)}, v64
            v_mul_f32 v65, {f32(-LOG2E)}, v65
            v_exp_f32 v64, v64
            v_exp_f32 v65, v65
            s_nop 0
            v_add_f32 v64, 1.0, v64
            v_add_f32 v65, 1.0, v65
            v_rcp_f32 v64, v64
            v_rcp_f32 v65, v65
            s_nop 0
            v_cvt_pk_bf16_f32 v64, v64, v65
            v_and_b32 v68, 0xffff0000, v64     ; g
            v_lshlrev_b32 v70, 16, v64         ; sr
            v_sub_f32 v69, 1.0, v68
            v_cvt_pk_bf16_f32 v69, v69, v69
            v_lshlrev_b32 v69, 16, v69         ; 1-g
            v_mov_b32 v71, 1
            v_mov_b32 v56, 0
            ds_write_b128 v56, v[68:71] offset:{LPRE}
            """)
            a.label(L)

        hk = [int(x) for x in cfg.hooks.split(",")]
        khooks = {}
        khooks.setdefault(cfg.qpoll, []).append(q_poll_issue)
        khooks.setdefault(cfg.qpoll + cfg.qchk, []).append(q_poll_check)
        if not heavy:
            khooks.setdefault(10, []).append(pre_issue)
            khooks.setdefault(14, []).append(prelude)

        stream.extend([(ld_xg, ())] + [(ld_g, (i,)) for i in range(4)])
        if heavy:
            stream.append((ld_g2, ()))
        stream.extend([(ld_k, (n,)) for n in range(32)])
        stream.extend([(ld_v, (G, i)) for G in range(2) for i in range(8)])
        assert cfg.burst <= 4
        slot(cfg.burst + 1, paced=False)
        a(f"""
        s_waitcnt lgkmcnt(0)
        s_barrier
        """)
        a.wait_for("wq")
        gemv_rows(a, 4, 16, 8, 48, 56, 59, slot)
        partial64(48, LQP, 56)
        lds_count(F_CQ, 56, 59)
        prof_at(1)
        fill("g", 10 if heavy else 5)
        a.wait_for("g")
        gemv_rows(a, 4, GR, XG, 48, 56, 59, slot)
        if heavy:
            for r0 in (4, 6):
                L = lab("GS")
                a(f"""
                s_cmp_lg_u32 s{sISQ}, 0
                s_cbranch_scc1 {L}
                """)
                gemv_rows(a, r0 + 2, GR, XG, 48, 56, 59, None, first=r0)
                a.label(L)
                slot()
        partial64(48, LGP, 56)
        lds_count(F_CG, 56, 59)
        prof_at(7)
        nxt = next(args[0] for fn, args in stream if fn is ld_k)
        for i, n in enumerate(hk):
            assert nxt + n < cfg.qpoll
            khooks[nxt + n] = [(lambda f=(i == len(hk) - 1): w0_hook(f))] + khooks.get(nxt + n, [])
        vstate["on"] = True
        while a.count("v0") < PH + 1:
            slot()
        a(f"""
        v_and_b32 v10, 7, v1
        v_mul_u32_u24 v10, {QS}, v10
        v_bfe_u32 v11, v1, 3, 1
        v_lshl_add_u32 v10, v11, 4, v10
        v_lshl_add_u32 v10, v3, 5, v10
        v_mov_b32 v61, 0xffff
        v_lshlrev_b32 v11, 4, v11
        v_lshlrev_b32 v61, v11, v61          ; P mask
        v_lshlrev_b32 v2, 13, v3
        v_lshl_add_u32 v2, v4, 4, v2
        """)
        lds_spin(F_CQ2, "ge", 8, 64, 56, 59)
        prof_at(3)
        a(f"""
        ds_read_b128 v[{QR}:{QR+3}], v10 offset:{LQ}
        ds_read_b128 v[{QR+4}:{QR+7}], v10 offset:{LQ+128}
        s_waitcnt lgkmcnt(0)
        """)
        def fixup(t):
            for ip in range(2):
                T = 2 * t + ip
                D = DR + (T & 3) * 4
                dpp(a, "v_add_f32", SR + T, D + 1, D, "row_ror:8", bank="0x3")
                dpp(a, "v_add_f32", SR + T, D + 2, D + 3, "row_ror:8", bank="0xc")
        for t in range(8):
            a.wait_for(f"k{t}")
            for hf in range(2):
                for ip in range(2):
                    T = 2 * t + ip
                    D = DR + (T & 3) * 4
                    r = KR + (4 * t + 2 * ip + hf) * 4
                    c = "0" if hf == 0 else f"v[{D}:{D+3}]"
                    a(f"v_mfma_f32_16x16x32_bf16 v[{D}:{D+3}], v[{r}:{r+3}], v[{QR+4*hf}:{QR+4*hf+3}], {c}")
            if t == 1:
                a("s_nop 3")
            if t > 0:
                fixup(t - 1)
            if t in (1, 3, 5):
                slot()
        slot()
        a("s_nop 7")
        fixup(7)
        st["qk"] = True
        stream.extend([(ld_v, (G, i)) for G in (2, 3) for i in range(8)])
        prof_at(4)
        for r in range(32):
            a(f"v_mov_b32 v{OR_+r}, 0")
        slot()
        a(f"v_max3_f32 v8, v{SR}, v{SR+1}, v{SR+2}")
        for r in range(3, 15, 2):
            a(f"v_max3_f32 v8, v8, v{SR+r}, v{SR+r+1}")
        a(f"v_max_f32 v8, v8, v{SR+15}")
        row_allreduce(a, [8], "v_max_f32", steps=(8,))
        cross_rows(a, [8], 10, "v_max_f32")
        a(f"""
        v_mul_f32 v8, {f32(CSC)}, v8
        v_mov_b32 v11, {f32(CSC)}
        v_mov_b32 v9, 0
        v_and_b32 v10, 7, v1
        v_lshlrev_b32 v10, 5, v10
        s_lshl_b32 s64, s3, 2
        v_add_u32 v60, s64, v10           ; head*32 + w*4
        ds_write_b32 v60, v8 offset:{LMX}
        """)
        for r in range(16):
            a(f"v_fma_f32 v{SR+r}, v{SR+r}, v11, -v8")
        lds_count(F_CM, 56, 59)
        slot()
        for r in range(16):
            a(f"v_exp_f32 v{SR+r}, v{SR+r}")
        a("s_nop 0")
        for r in range(16):
            a(f"v_cvt_pk_bf16_f32 v{PR+r}, v{SR+r}, v{SR+r}")
        slot()
        for r in range(16):
            a(f"v_and_b32 v{PR+r}, v61, v{PR+r}")
        for r in range(16):
            a(f"v_dot2c_f32_bf16 v9, s{sONE}, v{PR+r}")
        a("s_nop 1")
        row_allreduce(a, [9], "v_add_f32", steps=(8,))
        cross_rows(a, [9], 10, "v_add_f32")
        st["sm"] = True
        tl = ([(ld_wd, (i,)) for i in range(4)] if heavy else [])
        to = [(ld_wo, (i,)) for i in range(4)]
        stream.extend(to + tl if cfg.od else tl + to)
        tb = 0
        for G in range(4):
            vb = (VR0 + G * 32) if G < 2 else (VR1 + (G - 2) * 32)
            fill(f"v{G}", 8)
            a.wait_for(f"v{G}")
            if G == 3:
                prof_at(5)
                slot(cfg.extra, paced=False)
                a(f"""
                v_mov_b32 v56, 0
                v_and_b32 v10, 7, v1
                v_lshlrev_b32 v10, 5, v10
                ds_read_b32 v59, v56 offset:{F_CM}
                ds_read_b128 v[100:103], v10 offset:{LMX}
                ds_read_b128 v[104:107], v10 offset:{LMX+16}
                """)
            for j in range(4):
                T = TR + tb * 8
                tb ^= 1
                for p in range(4):
                    ra = vb + (2 * p) * 4 + j
                    rb = vb + (2 * p + 1) * 4 + j
                    a(f"v_perm_b32 v{T+p}, v{rb}, v{ra}, s{sPA}")
                    a(f"v_perm_b32 v{T+4+p}, v{rb}, v{ra}, s{sPB}")
                a("s_nop 1")
                for h in range(2):
                    e = 2 * j + h
                    a(f"v_mfma_f32_16x16x32_bf16 v[{OR_+4*e}:{OR_+4*e+3}], v[{T+4*h}:{T+4*h+3}], v[{PR+4*G}:{PR+4*G+3}], v[{OR_+4*e}:{OR_+4*e+3}]")
                if j in (1, 3) and G < 3:
                    slot()
            st["pv"] = G
        MS, MD = lab("MS"), lab("MD")
        a(f"""
        s_mov_b32 s{sIT}, 0
        """)
        a.label(MS)
        a(f"""
        s_waitcnt lgkmcnt(0)
        v_readfirstlane_b32 s64, v59
        s_cmp_ge_u32 s64, 8
        s_cbranch_scc1 {MD}
        s_add_u32 s{sIT}, s{sIT}, 1
        s_cmp_lt_u32 s{sIT}, {cfg.limit*20}
        s_cbranch_scc0 {MD}
        ds_read_b32 v59, v56 offset:{F_CM}
        ds_read_b128 v[100:103], v10 offset:{LMX}
        ds_read_b128 v[104:107], v10 offset:{LMX+16}
        s_branch {MS}
        """)
        a.label(MD)
        a(f"""
        v_max3_f32 v10, v100, v101, v102
        v_max3_f32 v10, v10, v103, v104
        v_max3_f32 v10, v10, v105, v106
        v_max_f32 v10, v10, v107            ; M (wg)
        v_sub_f32 v108, v8, v10
        v_exp_f32 v108, v108
        v_and_b32 v11, 7, v1
        v_mul_u32_u24 v11, {HS}, v11
        v_bfe_u32 v109, v1, 3, 1
        v_lshl_add_u32 v11, v109, 4, v11
        v_lshl_add_u32 v11, v3, 7, v11
        s_mul_i32 s64, s3, {WSZ}
        v_add_u32 v11, s64, v11
        v_mul_f32 v9, v9, v108
        ds_write_b32 v60, v9 offset:{LL}
        """)
        F = TR
        for r in range(4):
            for e in range(4):
                dpp(a, "v_add_f32", F + 4 * r + e, OR_ + 4 * e + r, OR_ + 4 * e + r, "row_ror:8", bank="0x3")
                dpp(a, "v_add_f32", F + 4 * r + e, OR_ + 4 * (4 + e) + r, OR_ + 4 * (4 + e) + r, "row_ror:8", bank="0xc")
            for k in (0, 2):
                a(f"v_pk_mul_f32 v[{F+4*r+k}:{F+4*r+k+1}], v[{F+4*r+k}:{F+4*r+k+1}], v[108:109] op_sel_hi:[1,0]")
            a(f"ds_write_b128 v11, v[{F+4*r}:{F+4*r+3}] offset:{LO + r*32}")
        lds_count(F_CO, 56, 59, rtn=64)
        NL = lab("NL")
        a(f"""
        s_cmp_eq_u32 s64, 0
        s_cselect_b32 s{sPOL}, 1, 0
        s_cmp_lg_u32 s64, 7
        s_cbranch_scc1 {NL}
        v_lshrrev_b32 v11, 5, v1
        v_mul_u32_u24 v11, {HS}, v11
        v_and_b32 v56, 31, v1
        v_lshl_add_u32 v11, v56, 4, v11
        v_and_b32 v56, 7, v1
        v_lshlrev_b32 v56, 5, v56
        """)
        def rd(k):
            for w in range(8):
                r = 128 + (k * 8 + w) * 4
                a(f"ds_read_b128 v[{r}:{r+3}], v11 offset:{LO + w*WSZ + 2*k*HS}")
        rd(0)
        a(f"""
        ds_read_b128 v[100:103], v56 offset:{LL}
        ds_read_b128 v[104:107], v56 offset:{LL+16}
        v_lshrrev_b32 v59, 2, v1
        v_lshlrev_b32 v59, 12, v59
        v_and_b32 v56, 3, v1
        v_lshl_add_u32 v59, v56, 4, v59
        s_lshl_b32 s64, s{sG}, 18
        s_lshl_b32 s65, s{sJ}, 6
        s_add_u32 s64, s64, s65
        s_add_u32 s64, s64, {AO}
        s_lshl_b32 s66, s{sG}, 13
        s_lshl_b32 s65, s{sJ}, 4
        s_add_u32 s66, s66, s65
        s_add_u32 s66, s66, {AML}
        v_lshlrev_b32 v56, 10, v1
        """)
        for k in range(4):
            if k == 0:
                a("s_waitcnt lgkmcnt(2)")
            else:
                a("s_waitcnt lgkmcnt(0)")
            if k < 3:
                rd(k + 1)
            b = 128 + k * 32
            tree8(a, b, 4, 4)
            for q in range(4):
                a(f"v_bfi_b32 v{b+q}, s{sMSK}, v{b+q}, v{TB+q}")
            a.vmem(f"buffer_store_dwordx4 v[{b}:{b+3}], v59, s[{sWS}:{sWS+3}], s64 offen sc1", "ost", optional=True)
            if k < 3:
                a("s_add_u32 s64, s64, 65536")
            if k == 0:
                a(f"""
                s_waitcnt lgkmcnt(8)
                v_pk_add_f32 v[100:101], v[100:101], v[102:103]
                v_pk_add_f32 v[104:105], v[104:105], v[106:107]
                v_pk_add_f32 v[100:101], v[100:101], v[104:105]
                v_add_f32 v101, v100, v101
                v_mov_b32 v100, v10
                v_mov_b32 v102, s{sTAG}
                v_mov_b32 v103, s{sTAG}
                s_mov_b64 exec, 0xff
                """)
                a.vmem(f"buffer_store_dwordx4 v[100:103], v56, s[{sWS}:{sWS+3}], s66 offen sc1", "ost", optional=True)
                a("s_mov_b64 exec, -1")
        dbg_at(2)
        a.label(NL)
        prof_at(6)
        def h1_addr():
            a(f"""
            v_lshlrev_b32 v110, 4, v1
            v_lshrrev_b32 v111, 2, v1
            v_lshlrev_b32 v111, 4, v111
            s_lshl_b32 s66, s2, 12
            s_add_u32 s66, s66, {AO}
            s_lshr_b32 s67, s2, 3
            s_lshl_b32 s67, s67, 10
            s_add_u32 s67, s67, {AML}
            """)
        def h1_issue(opt):
            for k in range(4):
                s = f"buffer_load_dwordx4 v[{128+4*k}:{131+4*k}], v110, s[{sWS}:{sWS+3}], s66 offen offset:{1024*k} sc1"
                a.vmem(s, "h1", optional=True) if opt else a(s)
                s = f"buffer_load_dwordx3 v[{144+4*k}:{146+4*k}], v111, s[{sWS}:{sWS+3}], s67 offen offset:{256*k} sc1"
                a.vmem(s, "h1", optional=True) if opt else a(s)
        if heavy and not cfg.od:
            fill("wd", 4)
            a.wait_for("wd")
            slot(8, paced=False)
        else:
            while stream:
                slot()
        h1_addr()
        L = lab("NP")
        a(f"""
        s_cmp_eq_u32 s{sPOL}, 0
        s_cbranch_scc1 {L}
        """)
        h1_issue(True)
        a.label(L)
        if not heavy:
            a(f"""
            v_and_b32 v112, 31, v1
            v_lshlrev_b32 v112, 1, v112
            s_lshl_b32 s68, s{sU}, 6
            """)
            a.vmem(f"buffer_load_ushort v113, v112, s[{sX}:{sX+3}], s68 offen", "xf")
        def d_stage():
            gemv_rows(a, 4, WDR, HR, 120, 56, 59)
            reduce8(a, 120)
            a(f"""
            v_and_b32 v56, 1, v3
            v_lshlrev_b32 v56, 1, v56
            v_lshrrev_b32 v59, 1, v3
            v_or_b32 v56, v56, v59                ; sigma(g4)
            v_lshl_add_u32 v56, v4, 3, v56
            v_lshlrev_b32 v56, 2, v56
            s_lshl_b32 s64, s3, 9
            v_add_u32 v56, s64, v56
            v_add_u32 v56, {LDP}, v56
            ds_write2_b32 v56, v120, v124 offset0:0 offset1:4
            """)
            lds_count(F_CD, 56, 59, rtn=64)
            L = lab("ND")
            a(f"""
            s_cmp_lg_u32 s64, 7
            s_cbranch_scc1 {L}
            v_and_b32 v56, 31, v1
            v_lshlrev_b32 v56, 4, v56
            """)
            for w in range(8):
                a(f"ds_read_b128 v[{64+4*w}:{67+4*w}], v56 offset:{LDP + w*512}")
            a(f"""
            v_bfe_u32 v56, v1, 3, 2
            v_mul_u32_u24 v56, {FINB}, v56
            v_and_b32 v59, 7, v1
            v_lshl_add_u32 v56, v59, 4, v56
            s_and_b32 s64, s{sU}, 7
            s_mul_i32 s64, s64, {4*FINB}
            s_lshr_b32 s65, s{sU}, 3
            s_lshl_b32 s65, s65, 7
            s_add_u32 s64, s64, s65
            s_add_u32 s64, s64, {OP + 256*128}
            s_waitcnt lgkmcnt(0)
            """)
            tree8(a, 64, 4, 4)
            for k in range(4):
                a(f"v_bfi_b32 v{64+k}, s{sMSK}, v{64+k}, v{TB+k}")
            a("s_mov_b64 exec, 0xffffffff")
            a.vmem(f"buffer_store_dwordx4 v[64:67], v56, s[{sWS}:{sWS+3}], s64 offen sc1", "yst", optional=True)
            a("s_mov_b64 exec, -1")
            a.label(L)
            prof_at(11)
        if heavy:
            if cfg.od:
                a.wait_for("wd")
            d_stage()
        NP, PL, PD = lab("NP"), lab("PL"), lab("PD")
        a(f"""
        s_cmp_eq_u32 s{sPOL}, 0
        s_cbranch_scc1 {NP}
        s_mov_b32 s{sIT}, 0
        """)
        a.label(PL)
        a("s_waitcnt vmcnt(0)")
        xor_check([128, 132, 136, 140], 56)
        for k in range(4):
            a(f"v_xor_b32 v{147+4*k}, s{sTAG}, v{146+4*k}")
        a(f"""
        v_or3_b32 v56, v56, v147, v151
        v_or3_b32 v56, v56, v155, v159
        v_cmp_ne_u32 vcc, 0, v56
        s_mov_b64 exec, -1
        s_cbranch_vccz {PD}
        s_add_u32 s{sIT}, s{sIT}, 1
        s_cmp_lt_u32 s{sIT}, {cfg.limit}
        s_cbranch_scc0 {PD}
        s_sleep {cfg.sleep}
        s_mov_b64 exec, vcc
        """)
        h1_issue(False)
        a(f"s_branch {PL}")
        a.label(PD)
        prof_at(14)
        a(f"""
        v_max3_f32 v100, v144, v148, v152
        v_max_f32 v100, v100, v156
        """)
        row_allreduce(a, [100], "v_max_f32", steps=(4, 8))
        cross_rows(a, [100], 56, "v_max_f32")
        for k in range(4):
            a(f"v_sub_f32 v{144+4*k}, v{144+4*k}, v100")
        for k in range(4):
            a(f"v_exp_f32 v{144+4*k}, v{144+4*k}")
        a(f"""
        s_nop 0
        v_mul_f32 v104, v144, v145
        """)
        for d in range(4):
            a(f"v_mul_f32 v{100+d}, v144, v{128+d}")
        for k in range(1, 4):
            a(f"v_fmac_f32 v104, v{144+4*k}, v{145+4*k}")
            for d in range(4):
                a(f"v_fmac_f32 v{100+d}, v{144+4*k}, v{128+4*k+d}")
        row_allreduce(a, [100, 101, 102, 103, 104], "v_add_f32", steps=(4, 8))
        cross_rows(a, [100, 101, 102, 103, 104], 105, "v_add_f32")
        a(f"""
        v_rcp_f32 v104, v104
        v_lshlrev_b32 v56, 4, v1
        v_mov_b32 v106, 1
        v_mov_b32 v107, 1
        v_mul_f32 v100, v100, v104
        v_mul_f32 v101, v101, v104
        v_mul_f32 v102, v102, v104
        v_mul_f32 v103, v103, v104
        v_cvt_pk_bf16_f32 v104, v100, v101
        v_cvt_pk_bf16_f32 v105, v102, v103
        s_mov_b64 exec, 0xf
        ds_write_b128 v56, v[104:107] offset:{LOV}
        s_mov_b64 exec, -1
        """)
        a.label(NP)
        OL, OD = lab("OL"), lab("OD")
        a(f"""
        v_lshlrev_b32 v56, 4, v3
        v_lshrrev_b32 v114, 2, v4
        v_mul_u32_u24 v114, {FINB}, v114
        v_and_b32 v59, 3, v4
        v_lshl_add_u32 v114, v59, 5, v114
        v_lshrrev_b32 v59, 5, v1
        v_lshl_add_u32 v114, v59, 4, v114
        s_mul_i32 s64, s3, {4*FINB}
        s_lshl_b32 s65, s2, 7
        s_add_u32 s64, s64, s65
        s_add_u32 s64, s64, {OP}
        s_mov_b32 s{sMC}, 0xffff
        s_mov_b32 s{sMC+1}, 0xffff
        s_mov_b32 s{sIT}, 0
        """)
        a.label(OL)
        a(f"""
        ds_read_b128 v[104:107], v56 offset:{LOV}
        s_waitcnt lgkmcnt(0)
        v_cmp_ne_u32 vcc, 1, v106
        s_cbranch_vccz {OD}
        s_sleep 1
        s_add_u32 s{sIT}, s{sIT}, 1
        s_cmp_lt_u32 s{sIT}, {cfg.limit*20}
        s_cbranch_scc1 {OL}
        """)
        a.label(OD)
        prof_at(8)
        a.wait_for("wo")
        gemv_rows(a, 4, WOR, 104, 120, 56, 59)
        a("s_nop 1")
        for k in range(4):
            a(f"v_permlane32_swap_b32 v{120+k}, v{124+k}")
        for k in range(4):
            a(f"v_add_f32 v{120+k}, v{120+k}, v{124+k}")
        for k in range(4):
            a(f"v_mov_b32 v{124+k}, v{120+k}")
        a("s_nop 1")
        for k in range(4):
            a(f"v_permlane16_swap_b32 v{120+k}, v{124+k}")
        for k in range(4):
            a(f"v_add_f32 v{120+k}, v{120+k}, v{124+k}")
        for k in range(4):
            a(f"v_bfi_b32 v{120+k}, s{sMSK}, v{120+k}, v{TB+k}")
        a(f"""
        s_mov_b64 exec, s[{sMC}:{sMC+1}]
        buffer_store_dwordx4 v[120:123], v114, s[{sWS}:{sWS+3}], s64 offen sc1
        s_mov_b64 exec, -1
        """)
        prof_at(9)
        if heavy:
            a("s_branch L_FIN_END")
            return
        FL, FD, F1, F2, F3, F4 = [lab("F") for _ in range(6)]
        a(f"""
        s_mul_i32 s66, s{sU}, {FINB}
        s_add_u32 s66, s66, {OP}
        s_lshl_b32 s67, s3, 9
        s_add_u32 s67, s67, s66
        s_add_u32 s67, s67, 32768
        s_lshl_b32 s65, s3, 12
        s_add_u32 s66, s66, s65
        s_mov_b64 s[{sMA}:{sMA+1}], -1
        s_cmp_lt_u32 s3, 7
        s_cselect_b32 s{sMB}, -1, 0
        s_mov_b32 s{sMB+1}, 0
        v_mov_b32 v144, 0
        v_mov_b32 v145, 0
        v_mov_b32 v146, 0
        v_mov_b32 v147, 0
        s_mov_b32 s{sIT}, 0
        """)
        a.label(FL)
        a(f"""
        s_cmp_eq_u64 s[{sMA}:{sMA+1}], 0
        s_cbranch_scc1 {F1}
        s_mov_b64 exec, s[{sMA}:{sMA+1}]
        """)
        for k in range(4):
            a(f"buffer_load_dwordx4 v[{128+4*k}:{131+4*k}], v110, s[{sWS}:{sWS+3}], s66 offen offset:{1024*k} sc1")
        a.label(F1)
        a(f"""
        s_cmp_eq_u64 s[{sMB}:{sMB+1}], 0
        s_cbranch_scc1 {F2}
        s_mov_b64 exec, s[{sMB}:{sMB+1}]
        buffer_load_dwordx4 v[144:147], v110, s[{sWS}:{sWS+3}], s67 offen sc1
        """)
        a.label(F2)
        a(f"""
        s_waitcnt vmcnt(0)
        s_mov_b64 exec, s[{sMA}:{sMA+1}]
        """)
        xor_check([128, 132, 136, 140], 56)
        a(f"""
        v_cmp_ne_u32 s[{sMA}:{sMA+1}], 0, v56
        s_mov_b64 exec, s[{sMB}:{sMB+1}]
        """)
        xor_check([144], 56)
        a(f"""
        v_cmp_ne_u32 s[{sMB}:{sMB+1}], 0, v56
        s_mov_b64 exec, -1
        s_nop 3
        s_or_b64 vcc, s[{sMA}:{sMA+1}], s[{sMB}:{sMB+1}]
        s_cmp_eq_u64 vcc, 0
        s_cbranch_scc1 {FD}
        s_add_u32 s{sIT}, s{sIT}, 1
        s_cmp_lt_u32 s{sIT}, {cfg.limit}
        s_cbranch_scc0 {FD}
        s_sleep {cfg.sleep}
        s_branch {FL}
        """)
        a.label(FD)
        prof_at(12)
        pk_add(a, 128, 128, 132); pk_add(a, 130, 130, 134)
        pk_add(a, 136, 136, 140); pk_add(a, 138, 138, 142)
        pk_add(a, 140, 128, 136); pk_add(a, 142, 130, 138)
        reduce8(a, 140)
        row_allreduce(a, [140, 144], "v_add_f32", steps=(8,))
        a(f"""
        v_mov_b32 v141, v144
        v_and_b32 v56, 1, v3
        v_lshlrev_b32 v56, 1, v56
        v_lshrrev_b32 v59, 1, v3
        v_or_b32 v56, v56, v59                ; sigma(g4)
        v_and_b32 v59, 7, v1
        v_lshl_add_u32 v56, v59, 2, v56       ; column
        v_lshlrev_b32 v56, 3, v56
        s_lshl_b32 s64, s3, 8
        v_add_u32 v56, s64, v56
        ds_write_b64 v56, v[140:141] offset:{LF}
        """)
        lds_count(F_CF, 56, 59, rtn=64)
        a(f"""
        s_cmp_lg_u32 s64, 7
        s_cbranch_scc1 L_FIN_END
        v_lshlrev_b32 v56, 2, v112
        v_mov_b32 v59, 0
        s_mov_b32 s{sIT}, 0
        """)
        for w in range(8):
            a(f"ds_read_b64 v[{64+2*w}:{65+2*w}], v56 offset:{LF + w*256}")
        a.label(F3)
        a(f"""
        ds_read_b128 v[100:103], v59 offset:{LPRE}
        s_waitcnt lgkmcnt(0)
        v_cmp_ne_u32 vcc, 1, v103
        s_cbranch_vccz {F4}
        s_add_u32 s{sIT}, s{sIT}, 1
        s_cmp_lt_u32 s{sIT}, {cfg.limit*20}
        s_cbranch_scc1 {F3}
        """)
        a.label(F4)
        if cfg.spin:
            SPL = lab("SPIN")
            a.label(SPL)
            a(f"""
            s_memrealtime s[70:71]
            s_waitcnt lgkmcnt(0)
            s_sub_u32 s70, s70, s{sTAG}
            s_cmp_lt_u32 s70, {cfg.spin}
            s_cbranch_scc1 {SPL}
            """)
        tree8(a, 64, 2, 2)
        a(f"""
        v_lshlrev_b32 v113, 16, v113        ; x
        v_cvt_pk_bf16_f32 v80, v64, v65
        v_and_b32 v81, 0xffff0000, v80      ; y
        v_lshlrev_b32 v80, 16, v80          ; a
        v_mul_f32 v81, v102, v81            ; y*sr
        v_mul_f32 v80, v100, v80            ; g*a
        v_cvt_pk_bf16_f32 v80, v80, v81
        v_and_b32 v81, 0xffff0000, v80
        v_lshlrev_b32 v80, 16, v80
        v_add_f32 v81, v81, v113            ; b
        v_cvt_pk_bf16_f32 v81, v81, v81
        v_lshlrev_b32 v81, 16, v81
        v_mul_f32 v81, v101, v81            ; (1-g)*b
        v_cvt_pk_bf16_f32 v81, v81, v81
        v_lshlrev_b32 v81, 16, v81
        v_add_f32 v64, v80, v81
        v_cvt_pk_bf16_f32 v64, v64, v64
        s_mov_b64 exec, 0xffffffff
        buffer_store_short v64, v112, s[{sOUT}:{sOUT+3}], s68 offen
        s_mov_b64 exec, -1
        """)
        dbg_at(1)

    body(True)
    a.label("L_LIGHT")
    body(False)
    a.label("L_FIN_END")
    if cfg.prof:
        prof_at(13)
        a(f"""
        s_lshl_b32 s64, s97, 9
        s_lshl_b32 s65, s3, 6
        s_add_u32 s64, s64, s65
        s_add_u32 s64, s64, {PROFB}
        v_lshlrev_b32 v56, 2, v1
        s_mov_b64 exec, 0xffff
        buffer_store_dword v0, v56, s[{sWS}:{sWS+3}], s64 offen
        """)
    a.label("L_END")
    a("s_endpgm")

    hdr = f"""; generated: single persistent kernel (q gemv + exchange, split-K attention, FFN, combine, final)
; @launch grid=(256,1,1) block=(512,1,1) lds={LDS_TOTAL}
.amdgcn_target "amdgcn-amd-amdhsa--gfx950"
.text
"""
    tail = f""".section .rodata,"a"
.p2align 6
.amdhsa_kernel {kname}
  .amdhsa_next_free_vgpr 256
  .amdhsa_next_free_sgpr 102
  .amdhsa_accum_offset 256
  .amdhsa_group_segment_fixed_size 0
  .amdhsa_kernarg_size 112
  .amdhsa_user_sgpr_count 2
  .amdhsa_user_sgpr_kernarg_segment_ptr 1
  .amdhsa_system_sgpr_workgroup_id_x 1
.end_amdhsa_kernel
"""
    return hdr + a.text() + tail

if __name__ == "__main__":
    cfg = Cfg()
    out = "v8.s"
    for arg in sys.argv[1:]:
        if "=" in arg:
            k, v = arg.split("=")
            if k in ("nt",):
                setattr(cfg, k, " nt" if v == "1" else "")
            elif k in ("hooks", "cks"):
                setattr(cfg, k, v)
            else:
                setattr(cfg, k, int(v))
        else:
            out = arg
    open(out, "w").write(build(cfg))
    print("wrote", out)
```

```python
import sys, struct

NAME = "gated_mix__gqa_block_cached__moe_arch_mod__decode"

def f32(x):
    return "0x%08x" % struct.unpack("<I", struct.pack("<f", x))[0]

QP = 0x000000
GP = 0x020000
AML = 0x040000
AO = 0x100000
OP = 0x200000
FINB = 288 * 128
CNT = 0x060000
PROFB = 0x380000
WS_SIZE = 268435456

LOG2E = 1.4426950408889634
CSC = LOG2E * (128 ** -0.5)

LQP = 0
LGP = 2048
LDP = 4096
LQ = 8192
QS = 272
LMX = 10368
LL = 10624
LOV = 10880
LPRE = 10944
LFL = 10960
LF = 11264
LO = 13312
HS = 544
WSZ = 8 * HS
LDS_TOTAL = LO + 8 * WSZ
F_CQ, F_CG, F_TAG, F_CQ2, F_CM, F_CO, F_CD, F_CF = [LFL + 4 * i for i in range(8)]
F_CK = LFL + 32
F_CL = LFL + 64

class Cfg:
    pace = 2
    prof = 0
    nt = " nt"
    limit = 200000
    sleep = 1
    burst = 2
    qpoll = 20
    qchk = 3
    extra = 2
    hooks = "0,2,4,8"
    od = 0
    xr = 0
    plo = 1
    phi = 3
    var = 0
    xhi = 0
    xlo = 0
    ctl = 0
    cks = "8,16,24,32,40,48,56"
    ckd = 5
    ckw = 3
    t1 = 21
    t2 = 43
    t3 = 58
    wl = 1
    wh = 6
    lmax = 3
    spin = 0
    dly = 0
    dbgt = 0
    look = 0
    base = 1

class A:
    def __init__(self):
        self.l = []
        self.vm = []
    def __call__(self, s):
        for line in s.strip("\n").split("\n"):
            line = line.strip()
            if line:
                self.l.append("    " + line)
    def label(self, s):
        self.l.append(s + ":")
    def raw(self, s):
        self.l.append(s)
    def text(self):
        return "\n".join(self.l) + "\n"
    def vmem(self, s, tag, optional=False):
        self(s)
        self.vm.append((tag, optional))
    def cnt_after(self, tag):
        idx = max(i for i, (t, o) in enumerate(self.vm) if t == tag)
        return sum(1 for (t, o) in self.vm[idx + 1:] if not o)
    def count(self, tag):
        return sum(1 for t, o in self.vm if t == tag)
    def wait_for(self, tag, extra=""):
        n = self.cnt_after(tag)
        assert n <= 63
        self(f"s_waitcnt vmcnt({n}){extra}")

def srd(a, sb, size):
    a(f"""
    s_and_b32 s{sb+1}, s{sb+1}, 0xffff
    s_mov_b32 s{sb+2}, {size}
    s_mov_b32 s{sb+3}, 0x00020000
    """)

def dpp(a, op, d, s0, s1, ctrl, bank="0xf"):
    a(f"{op}_dpp v{d}, v{s0}, v{s1} {ctrl} row_mask:0xf bank_mask:{bank}")

def row_allreduce(a, regs, op, steps=(8, 4, 2, 1)):
    for r in steps:
        a("s_nop 1")
        for v in regs:
            dpp(a, op, v, v, v, f"row_ror:{r}")

def cross_rows(a, regs, tmp, op):
    for sw in ("v_permlane16_swap_b32", "v_permlane32_swap_b32"):
        for i, v in enumerate(regs):
            a(f"v_mov_b32 v{tmp+i}, v{v}")
        a("s_nop 1")
        for i, v in enumerate(regs):
            a(f"{sw} v{v}, v{tmp+i}")
        for i, v in enumerate(regs):
            a(f"{op} v{v}, v{v}, v{tmp+i}")

def reduce8(a, acc):
    a("s_nop 1")
    for b in (0, 2, 4, 6):
        a(f"v_permlane32_swap_b32 v{acc+b}, v{acc+b+1}")
    for b in (0, 2, 4, 6):
        a(f"v_add_f32 v{acc+b}, v{acc+b}, v{acc+b+1}")
    a("s_nop 1")
    a(f"v_permlane16_swap_b32 v{acc}, v{acc+2}")
    a(f"v_permlane16_swap_b32 v{acc+4}, v{acc+6}")
    a(f"v_add_f32 v{acc}, v{acc}, v{acc+2}")
    a(f"v_add_f32 v{acc+4}, v{acc+4}, v{acc+6}")

def gemv_rows(a, nrows, wbase, xp, acc, t0, t1, slot=None, first=0):
    if first == 0:
        for r in range(8):
            a(f"v_mov_b32 v{acc+r}, 0")
    for i in range(first, nrows):
        xr = xp + i // 2
        if i % 2 == 0:
            a(f"v_and_b32 v{t0}, 0xffff, v{xr}")
            a(f"v_lshlrev_b32 v{t1}, 16, v{xr}")
        else:
            a(f"v_lshrrev_b32 v{t0}, 16, v{xr}")
            a(f"v_and_b32 v{t1}, 0xffff0000, v{xr}")
        for d in range(4):
            a(f"v_dot2c_f32_bf16 v{acc+2*d}, v{wbase+4*i+d}, v{t0}")
            a(f"v_dot2c_f32_bf16 v{acc+2*d+1}, v{wbase+4*i+d}, v{t1}")
        if slot is not None and i % 2 == 1:
            slot()

def pk_add(a, d, s0, s1):
    a(f"v_pk_add_f32 v[{d}:{d+1}], v[{s0}:{s0+1}], v[{s1}:{s1+1}]")

def tree8(a, base, stride, n):
    for st in (1, 2, 4):
        for w in range(0, 8, 2 * st):
            for k in range(0, n, 2):
                pk_add(a, base + w * stride + k, base + w * stride + k, base + (w + st) * stride + k)

SR = 16
DR = 32
QR = 48
VR0, KR = 64, 128
VR1, OR_, TR, PR = 128, 192, 224, 240
WDR, WOR = 16, 32
GR, XG = 64, 96
TB = 12
HR = 62
vZ = 57
sK, sV, sWS, sX, sWQ, sGU, sDBG, sOUT, sWR, sGW = 4, 8, 12, 16, 20, 24, 28, 32, 36, 40
sWO, sWD = 84, 88
sG, sJ = 44, 45
sPUB = 46
sTAG = 47
sT = 48
sWQS, sXQS, sGUS, sGUX = 56, 57, 58, 59
sWOS, sWDS = 60, 62
sPA, sPB = 72, 73
sMA = 74
sIT = 76
sMSK = 77
sMB = 78
sPOL = 80
sONE = 81
sQPL, sHPL = 82, 83
sQPUB, sGPUB = 92, 93
sMC = 94
sCAND = 96
sU, sISQ, sHF, sHPM = 98, 99, 100, 101

def build(cfg):
    a = A()
    NT = cfg.nt
    P = cfg.pace
    PH = cfg.phi if cfg.var else P
    if cfg.ctl:
        PH = cfg.base + cfg.look
    kname = NAME + "_kernel"
    uid = [0]
    def lab(p):
        uid[0] += 1
        return f"L_{p}{uid[0]}"
    def prof_at(i):
        if cfg.prof:
            a(f"""
            s_memrealtime s[70:71]
            s_waitcnt lgkmcnt(0)
            v_writelane_b32 v0, s70, {i}
            """)

    def dbg_at(i, t=116):
        if cfg.dbgt:
            a(f"""
            s_memrealtime s[70:71]
            s_waitcnt lgkmcnt(0)
            s_sub_u32 s70, s70, s{sTAG}
            v_mov_b32 v{t}, s70
            s_mov_b64 exec, 1
            buffer_atomic_umax v{t}, off, s[{sDBG}:{sDBG+3}], 0 offset:{4*i} sc1
            s_mov_b64 exec, -1
            """)
    a.raw(f".globl {kname}")
    a.raw(".p2align 8")
    a.raw(f".type {kname},@function")
    a.label(kname)
    a(f"""
    s_cmp_ge_u32 s2, 256
    s_cbranch_scc1 L_END
    s_mov_b32 s97, s2
    s_xor_b32 s2, s2, {cfg.xr}
    s_load_dwordx2 s[{sX}:{sX+1}], s[0:1], 0
    s_load_dwordx2 s[{sWQ}:{sWQ+1}], s[0:1], 24
    s_load_dwordx2 s[{sDBG}:{sDBG+1}], s[0:1], 96
    s_load_dwordx2 s[{sGU}:{sGU+1}], s[0:1], 56
    s_load_dwordx2 s[68:69], s[0:1], 64
    s_load_dwordx2 s[{sK}:{sK+1}], s[0:1], 8
    s_load_dwordx2 s[{sV}:{sV+1}], s[0:1], 16
    s_load_dwordx2 s[{sWS}:{sWS+1}], s[0:1], 104
    s_load_dwordx2 s[{sWO}:{sWO+1}], s[0:1], 32
    s_load_dwordx2 s[{sWD}:{sWD+1}], s[0:1], 72
    s_load_dwordx2 s[{sOUT}:{sOUT+1}], s[0:1], 88
    s_load_dwordx2 s[{sWR}:{sWR+1}], s[0:1], 48
    s_load_dwordx2 s[{sGW}:{sGW+1}], s[0:1], 80
    s_memrealtime s[70:71]
    v_and_b32 v1, 63, v0
    v_lshrrev_b32 v2, 6, v0
    v_lshrrev_b32 v3, 4, v1       ; g4
    v_and_b32 v4, 15, v1          ; c16
    v_mov_b32 v0, 0
    v_readfirstlane_b32 s3, v2
    s_lshr_b32 s{sG}, s2, 6
    s_and_b32 s{sJ}, s2, 63
    v_bfe_u32 v5, v1, 2, 2
    v_lshlrev_b32 v5, 10, v5
    v_bfe_u32 v8, v1, 1, 1
    v_lshl_add_u32 v5, v8, 8, v5
    v_lshl_add_u32 v5, v3, 5, v5
    v_and_b32 v8, 1, v1
    v_lshl_add_u32 v5, v8, 4, v5
    v_lshlrev_b32 v6, 10, v3
    v_lshl_add_u32 v6, v4, 4, v6  ; V voffset
    s_lshl_b32 s{sT}, s2, 18
    s_lshl_b32 s64, s3, 12
    s_add_u32 s{sT}, s{sT}, s64
    """)
    for t in range(1, 8):
        a(f"s_add_u32 s{sT+t}, s{sT}, {t*32768}")
    a(f"""
    v_lshrrev_b32 v56, 3, v1            ; r8
    v_and_b32 v58, 7, v1                ; pc
    v_lshlrev_b32 v10, 15, v56
    v_lshl_add_u32 v10, v58, 4, v10
    v_lshlrev_b32 v11, 3, v56           ; x voffset
    v_mul_u32_u24 v60, 28672, v56
    v_lshl_add_u32 v60, v58, 4, v60
    s_bfe_u32 s{sIT}, s2, 0x30003
    s_bfe_u32 s64, s2, 0x10002
    s_lshl_b32 s64, s64, 3
    s_add_u32 s64, s64, s{sIT}          ; cbq
    s_and_b32 s65, s{sJ}, 3             ; ks
    s_lshl_b32 s66, s65, 8
    s_lshl_b32 s67, s3, 5
    s_add_u32 s66, s66, s67             ; row0
    s_lshl_b32 s{sXQS}, s66, 1
    s_lshl_b32 s{sWQS}, s66, 13
    s_lshl_b32 s67, s{sG}, 11
    s_add_u32 s{sWQS}, s{sWQS}, s67
    s_lshl_b32 s67, s64, 7
    s_add_u32 s{sWQS}, s{sWQS}, s67
    s_lshl_b32 s{sQPL}, s{sG}, 14       ; QP + G*16384
    s_lshr_b32 s67, s64, 1
    s_lshl_b32 s67, s67, 11
    s_add_u32 s{sQPUB}, s{sQPL}, s67
    s_lshl_b32 s67, s65, 9
    s_add_u32 s{sQPUB}, s{sQPUB}, s67
    s_and_b32 s67, s64, 1
    s_lshl_b32 s67, s67, 8
    s_add_u32 s{sQPUB}, s{sQPUB}, s67
    s_lshl_b32 s67, s3, 11
    s_add_u32 s{sQPL}, s{sQPL}, s67
    v_and_b32 v9, 1, v3
    v_lshlrev_b32 v9, 1, v9
    v_lshrrev_b32 v8, 1, v3
    v_or_b32 v9, v9, v8                 ; sigma(g4)
    v_bfe_u32 v8, v1, 3, 1
    v_lshl_add_u32 v9, v8, 2, v9
    v_lshl_add_u32 v9, v58, 3, v9
    v_lshlrev_b32 v9, 2, v9
    v_lshl_add_u32 v7, v2, 8, v9
    s_cmp_gt_u32 s{sIT}, 3
    s_cselect_b32 s65, 1, 0
    s_sub_u32 s65, s{sIT}, s65          ; r'
    s_lshl_b32 s65, s65, 3
    s_mul_i32 s{sU}, s{sG}, 56
    s_add_u32 s{sU}, s{sU}, s65
    s_and_b32 s65, s2, 7
    s_add_u32 s{sU}, s{sU}, s65         ; u
    s_lshl_b32 s66, s{sG}, 3
    s_add_u32 s66, s66, s65             ; f
    s_sub_u32 s67, s{sU}, 196
    s_cmp_ge_u32 s{sU}, 196
    s_cselect_b32 s{sISQ}, 1, 0
    s_add_u32 s65, s66, 28
    s_cmp_eq_u32 s{sIT}, 3
    s_cselect_b32 s67, s65, s67         ; qn
    s_cselect_b32 s{sISQ}, 1, s{sISQ}
    s_cselect_b32 s{sU}, s66, s{sU}     ; u or f
    s_cmp_lg_u32 s{sISQ}, 0
    s_cbranch_scc1 L_GQ
    s_lshr_b32 s64, s{sU}, 2            ; nb
    s_mul_i32 s65, s64, 37
    s_lshr_b32 s65, s65, 8              ; c7
    s_mul_i32 s66, s65, 7
    s_sub_u32 s64, s64, s66             ; rr
    s_cmp_ge_u32 s64, 3
    s_addc_u32 s64, s64, 0
    s_lshl_b32 s65, s65, 3
    s_add_u32 s64, s64, s65             ; cblock
    s_bfe_u32 s{sHF}, s{sU}, 0x10001    ; mat
    s_and_b32 s66, s{sU}, 1             ; part
    s_lshl_b32 s65, s66, 9
    s_lshl_b32 s67, s3, 6
    s_add_u32 s65, s65, s67             ; row0
    s_mov_b32 s67, 0
    s_branch L_GC
L_GQ:
    s_min_u32 s66, s67, 55
    s_lshr_b32 s64, s66, 3
    s_lshl_b32 s64, s64, 3
    s_add_u32 s64, s64, 3               ; cblock
    s_bfe_u32 s{sHF}, s66, 0x10002      ; mat
    s_and_b32 s66, s66, 3               ; part
    s_lshl_b32 s65, s66, 8
    s_lshl_b32 s{sHPM}, s3, 5
    s_add_u32 s65, s65, s{sHPM}         ; row0
L_GC:
    s_lshl_b32 s{sGUX}, s65, 1
    s_mul_i32 s{sGUS}, s65, 7168
    s_lshl_b32 s65, s64, 7
    s_add_u32 s{sGUS}, s{sGUS}, s65
    s_lshl_b32 s{sGPUB}, s64, 11
    s_lshl_b32 s65, s{sHF}, 10
    s_add_u32 s{sGPUB}, s{sGPUB}, s65
    s_lshl_b32 s65, s66, 8
    s_add_u32 s{sGPUB}, s{sGPUB}, s65
    s_lshl_b32 s65, s67, 8
    s_add_u32 s65, s65, {56*2048 - 56*256}
    s_cmp_ge_u32 s67, 56
    s_cselect_b32 s{sGPUB}, s65, s{sGPUB}
    s_add_u32 s{sGPUB}, s{sGPUB}, {GP}
    s_mov_b32 s{sPOL}, s{sHF}
    s_and_b32 s64, s{sU}, 0xf8
    s_add_u32 s64, s64, s3
    s_lshl_b32 s{sWDS}, s64, 15
    s_and_b32 s65, s{sU}, 7
    s_lshl_b32 s65, s65, 8
    s_add_u32 s{sWDS}, s{sWDS}, s65
    s_add_u32 s{sWDS+1}, s{sWDS}, 4096
    s_lshr_b32 s65, s64, 2
    s_lshl_b32 s{sHPL}, s65, 11
    s_and_b32 s65, s65, 7
    s_cmp_eq_u32 s65, 3
    s_cselect_b32 s{sHF}, 1.0, 0.5
    s_cselect_b32 s{sHPM}, 3, 1
    s_and_b32 s65, s64, 3
    s_lshl_b32 s65, s65, 6
    s_add_u32 s{sHPL}, s{sHPL}, s65
    s_add_u32 s{sHPL}, s{sHPL}, {GP}
    s_lshl_b32 s{sWOS}, s2, 15
    s_lshl_b32 s65, s3, 8
    s_add_u32 s{sWOS}, s{sWOS}, s65
    s_add_u32 s{sWOS+1}, s{sWOS}, 4096
    s_mov_b32 s{sMSK}, 0xffffff00
    s_mov_b32 s{sPA}, 0x05040100
    s_mov_b32 s{sPB}, 0x07060302
    s_mov_b32 s{sONE}, 0x3f803f80
    s_mov_b32 s{sPUB}, 0
    s_mov_b32 s{sTAG}, 0
    s_mov_b32 s{sCAND}, 0
    s_waitcnt lgkmcnt(0)
    s_and_b32 s64, s97, 7
    s_lshr_b32 s65, {cfg.xhi}, s64
    s_and_b32 s65, s65, 1
    s_lshr_b32 s64, {cfg.xlo}, s64
    s_and_b32 s64, s64, 1
    s_add_u32 s0, s65, {(cfg.pace - cfg.base) if cfg.ctl else 1}
    s_sub_u32 s0, s0, s64
    s_mov_b32 s1, 4
    s_cmp_eq_u32 s{sPOL}, 0
    s_cbranch_scc1 L_GSEL
    s_mov_b64 s[{sGU}:{sGU+1}], s[68:69]
    """)
    a.label("L_GSEL")
    srd(a, sX, 2048)
    srd(a, sWQ, 0x800000)
    srd(a, sDBG, 256)
    srd(a, sGU, 0x700000)
    srd(a, sK, 0x4000000)
    srd(a, sV, 0x4000000)
    srd(a, sWS, WS_SIZE)
    srd(a, sWO, 0x800000)
    srd(a, sWD, 0x700000)
    srd(a, sOUT, 2048)
    srd(a, sWR, 2048)
    srd(a, sGW, 2048)
    if cfg.prof:
        a("v_writelane_b32 v0, s70, 0")
    a(f"""
    s_cmp_lg_u32 s3, 0
    s_cbranch_scc1 L_NOT0
    s_cmp_eq_u32 s2, 0
    s_cbranch_scc0 L_W0_T1
    s_or_b32 s{sCAND}, s70, 1
    v_mov_b32 v58, s{sCAND}
    v_mov_b32 v59, 0
    s_mov_b64 exec, 1
    buffer_atomic_cmpswap v[58:59], off, s[{sDBG}:{sDBG+3}], 0 sc0 sc1
    s_mov_b64 exec, -1
    s_branch L_W0_T2
    """)
    a.label("L_W0_T1")
    a(f"buffer_load_dword v58, off, s[{sDBG}:{sDBG+3}], 0 sc1")
    a.label("L_W0_T2")
    a(f"""
    v_mov_b32 v56, 0
    v_lshlrev_b32 v57, 2, v1
    ds_write_b32 v57, v56 offset:{LOV}
    """)
    a.label("L_NOT0")
    if cfg.ctl:
        a(f"""
        s_cmp_lg_u32 s2, 0
        s_cbranch_scc1 L_NCI
        s_cmp_lg_u32 s3, 1
        s_cbranch_scc1 L_NCI
        v_lshlrev_b32 v57, 7, v1
        v_mov_b32 v56, 0
        s_mov_b32 s64, {CNT}
        s_mov_b64 exec, 0xffffffff
        buffer_store_dword v56, v57, s[{sWS}:{sWS+3}], s64 offen sc1
        s_mov_b64 exec, -1
        """)
        a.label("L_NCI")
    a.vm = [("tag", True)]
    a.vmem(f"buffer_load_dwordx2 v[8:9], v11, s[{sX}:{sX+3}], s{sXQS} offen", "xq")
    for i in range(4):
        a.vmem(f"buffer_load_dwordx4 v[{16+4*i}:{19+4*i}], v10, s[{sWQ}:{sWQ+3}], s{sWQS} offen{NT}", "wq")
        if i < 3:
            a(f"s_add_u32 s{sWQS}, s{sWQS}, 8192")
    a(f"""
    s_cmp_eq_u32 s{sIT}, 3
    s_cbranch_scc1 L_LIGHT
    """)
    vm0 = list(a.vm)

    def body(heavy):
        a.vm = list(vm0)
        st = {"qk": False, "pv": -1, "sm": False}
        def ld_xg():
            a.vmem(f"buffer_load_dwordx2 v[{XG}:{XG+1}], v11, s[{sX}:{sX+3}], s{sGUX} offen", "g")
        def ld_g(i):
            a.vmem(f"buffer_load_dwordx4 v[{GR+4*i}:{GR+4*i+3}], v60, s[{sGU}:{sGU+3}], s{sGUS} offen{NT}", "g")
            if i < 3:
                a(f"s_add_u32 s{sGUS}, s{sGUS}, 7168")
        def ld_g2():
            L = lab("G2")
            a(f"""
            s_cmp_lg_u32 s{sISQ}, 0
            s_cbranch_scc1 {L}
            s_add_u32 s{sGUS}, s{sGUS}, {29*7168}
            """)
            a.vmem(f"buffer_load_dwordx2 v[{XG+2}:{XG+3}], v11, s[{sX}:{sX+3}], s{sGUX} offen offset:64", "g", optional=True)
            for i in range(4, 8):
                if i > 4:
                    a(f"s_waitcnt vmcnt({P})")
                a.vmem(f"buffer_load_dwordx4 v[{GR+4*i}:{GR+4*i+3}], v60, s[{sGU}:{sGU+3}], s{sGUS} offen{NT}", "g", optional=True)
                if i < 7:
                    a(f"s_add_u32 s{sGUS}, s{sGUS}, 7168")
            a.label(L)
        def ld_k(n):
            t, j = n >> 2, n & 3
            r = KR + n * 4
            a.vmem(f"buffer_load_dwordx4 v[{r}:{r+3}], v5, s[{sK}:{sK+3}], s{sT+t} offen offset:{(j&1)*128+(j>>1)*512}{NT}", f"k{t}")
            for h in khooks.get(n, []):
                h()
            post(n)
        def ld_v(G, i):
            if G >= 2:
                assert st["qk"]
            base = (VR0 + G * 32) if G < 2 else (VR1 + (G - 2) * 32)
            r = base + i * 4
            a.vmem(f"buffer_load_dwordx4 v[{r}:{r+3}], v6, s[{sV}:{sV+3}], s{sT+2*G+(i>>2)} offen offset:{(i&3)*256}{NT}", f"v{G}")
            post(32 + 8 * G + i)
        cks = [int(x) for x in cfg.cks.split(",")] if cfg.ctl else []
        def level():
            a(f"""
            s_mov_b32 s0, {P - cfg.base + 2}
            s_cmp_le_u32 s64, {cfg.t1}
            s_cselect_b32 s65, 1, 0
            s_cmp_eq_u32 s64, 0
            s_cselect_b32 s65, 0, s65
            s_sub_u32 s0, s0, s65
            s_cmp_gt_u32 s64, {cfg.t2}
            s_addc_u32 s0, s0, 0
            s_cmp_gt_u32 s64, {cfg.t3}
            s_addc_u32 s0, s0, 0
            s_cmp_ge_u32 s1, {cfg.wh}
            s_addc_u32 s0, s0, 0
            s_cmp_le_i32 s1, {cfg.wl}
            s_subb_u32 s0, s0, 0
            s_max_u32 s0, s0, 2
            s_sub_u32 s0, s0, 2
            s_min_u32 s0, s0, {cfg.lmax}
            """)
        def post(idx):
            if not cks:
                return
            if idx in cks:
                assert vstate["on"]
                k = cks.index(idx)
                L = lab("CK")
                a(f"""
                v_mov_b32 v7, 1
                s_mov_b64 exec, 1
                ds_add_rtn_u32 v7, v1, v7 offset:{F_CK + 4*k}
                ds_read_b32 v57, v1 offset:{F_CL}
                s_waitcnt lgkmcnt(0)
                v_readfirstlane_b32 s1, v7
                v_readfirstlane_b32 s64, v57
                v_mov_b32 v57, 1
                s_lshl_b32 s65, s{sG}, 7
                s_add_u32 s65, s65, {CNT + k*512}
                s_cmp_lg_u32 s1, {cfg.ckw}
                s_cbranch_scc1 {L}
                """)
                a.vmem(f"buffer_atomic_add v57, off, s[{sWS}:{sWS+3}], s65 sc0 sc1", "ck", optional=True)
                a.label(L)
                a("s_mov_b64 exec, -1")
                level()
            elif idx - cfg.ckd in cks:
                L = lab("CP")
                a(f"""
                s_cmp_lg_u32 s1, {cfg.ckw}
                s_cbranch_scc1 {L}
                """)
                a.wait_for("ck")
                a(f"""
                v_add_u32 v57, 1, v57
                s_mov_b64 exec, 1
                ds_write_b32 v1, v57 offset:{F_CL}
                s_mov_b64 exec, -1
                """)
                a.label(L)
            elif idx > cks[0] + cfg.ckd and any((idx - cfg.ckd - d) in cks for d in (1, 2)):
                a(f"""
                s_mov_b64 exec, 1
                ds_read_b32 v7, v1 offset:{F_CL}
                s_mov_b64 exec, -1
                s_waitcnt lgkmcnt(0)
                v_readfirstlane_b32 s64, v7
                """)
                level()
        def ld_wo(i):
            assert st["qk"]
            a.vmem(f"buffer_load_dwordx4 v[{WOR+4*i}:{WOR+4*i+3}], v2, s[{sWO}:{sWO+3}], s{sWOS+(i>>1)} offen offset:{(i&1)*2048}{NT}", "wo")
        def ld_wd(i):
            assert st["sm"]
            a.vmem(f"buffer_load_dwordx4 v[{WDR+4*i}:{WDR+4*i+3}], v2, s[{sWD}:{sWD+3}], s{sWDS+(i>>1)} offen offset:{(i&1)*2048}{NT}", "wd")
        stream = []
        vstate = {"on": False}
        def slot(n=1, paced=True):
            for _ in range(n):
                if stream:
                    fn, args = stream.pop(0)
                    if paced and cfg.ctl and vstate["on"]:
                        GO = lab("GO")
                        for lv in range(cfg.lmax, 0, -1):
                            a(f"""
                            s_waitcnt vmcnt({cfg.base + lv})
                            s_cmp_ge_u32 s0, {lv}
                            s_cbranch_scc1 {GO}
                            """)
                        a(f"s_waitcnt vmcnt({cfg.base})")
                        a.label(GO)
                    elif paced and cfg.var and vstate["on"]:
                        GO = lab("GO")
                        a(f"""
                        s_waitcnt vmcnt({cfg.phi})
                        s_cmp_eq_u32 s0, 2
                        s_cbranch_scc1 {GO}
                        s_waitcnt vmcnt({P})
                        s_cmp_eq_u32 s0, 1
                        s_cbranch_scc1 {GO}
                        s_waitcnt vmcnt({cfg.plo})
                        """)
                        a.label(GO)
                    elif paced:
                        a(f"s_waitcnt vmcnt({P})")
                    fn(*args)
        def fill(tag, n):
            while stream and (a.count(tag) < n or a.cnt_after(tag) < (PH if vstate["on"] else P) + 1):
                slot()
        def lds_count(flag, t0, t1, rtn=None):
            a(f"""
            v_mov_b32 v{t0}, 0
            v_mov_b32 v{t1}, 1
            s_waitcnt lgkmcnt(0)
            s_mov_b64 exec, 1
            """)
            if rtn is None:
                a(f"ds_add_u32 v{t0}, v{t1} offset:{flag}")
                a("s_mov_b64 exec, -1")
            else:
                a(f"""
                ds_add_rtn_u32 v{t1}, v{t0}, v{t1} offset:{flag}
                s_mov_b64 exec, -1
                s_waitcnt lgkmcnt(0)
                v_readfirstlane_b32 s{rtn}, v{t1}
                """)
        def lds_spin(flag, cond, val, dst, t0, t1):
            L, D = lab("SP"), lab("SPD")
            a(f"""
            v_mov_b32 v{t0}, 0
            s_mov_b32 s{sIT}, 0
            """)
            a.label(L)
            a(f"""
            ds_read_b32 v{t1}, v{t0} offset:{flag}
            s_waitcnt lgkmcnt(0)
            v_readfirstlane_b32 s{dst}, v{t1}
            s_cmp_{cond}_u32 s{dst}, {val}
            s_cbranch_scc1 {D}
            s_sleep 1
            s_add_u32 s{sIT}, s{sIT}, 1
            s_cmp_lt_u32 s{sIT}, {cfg.limit*20}
            s_cbranch_scc1 {L}
            """)
            a.label(D)
        def tag_bytes():
            a(f"""
            v_mov_b32 v{TB+3}, s{sTAG}
            v_and_b32 v{TB}, 0xff, v{TB+3}
            v_bfe_u32 v{TB+1}, v{TB+3}, 8, 8
            v_bfe_u32 v{TB+2}, v{TB+3}, 16, 8
            v_lshrrev_b32 v{TB+3}, 24, v{TB+3}
            """)
        def xor_check(regs4, t):
            first = True
            for b in regs4:
                for k in range(4):
                    a(f"v_xor_b32 v{b+k}, v{TB+k}, v{b+k}")
            for b in regs4:
                if first:
                    a(f"v_or3_b32 v{t}, v{b}, v{b+1}, v{b+2}")
                    a(f"v_or_b32 v{t}, v{t}, v{b+3}")
                    first = False
                else:
                    a(f"v_or3_b32 v{t}, v{t}, v{b}, v{b+1}")
                    a(f"v_or3_b32 v{t}, v{t}, v{b+2}, v{b+3}")
            a(f"v_and_b32 v{t}, 0xff, v{t}")
        def partial64(acc, base, t):
            reduce8(a, acc)
            row_allreduce(a, [acc, acc + 4], "v_add_f32", steps=(8,))
            a(f"""
            v_and_b32 v{t}, 8, v1
            v_cmp_ne_u32 vcc, 0, v{t}
            s_nop 1
            v_cndmask_b32 v{acc}, v{acc}, v{acc+4}, vcc
            ds_write_b32 v7, v{acc} offset:{base}
            """)
        def w0_hook(final):
            S, H, R, GOT, R2 = lab("HS"), lab("HH"), lab("HR"), lab("HG"), lab("HQ")
            a(f"""
            s_cmp_lg_u32 s3, 0
            s_cbranch_scc1 {S}
            s_cmp_lg_u32 s{sPUB}, 0
            s_cbranch_scc1 {S}
            s_mov_b32 s{sIT}, 0
            s_cmp_lg_u32 s{sTAG}, 0
            s_cbranch_scc1 {H}
            """)
            a.wait_for("tag")
            a.label(R)
            a(f"""
            v_readfirstlane_b32 s{sTAG}, v58
            s_cmp_eq_u32 s{sTAG}, 0
            s_cselect_b32 s{sTAG}, s{sCAND}, s{sTAG}
            s_cmp_lg_u32 s{sTAG}, 0
            s_cbranch_scc1 {GOT}
            """)
            a.vmem(f"buffer_load_dword v58, off, s[{sDBG}:{sDBG+3}], 0 sc1", "tag", optional=True)
            if final:
                a(f"""
                s_waitcnt vmcnt(0)
                s_add_u32 s{sIT}, s{sIT}, 1
                s_cmp_lt_u32 s{sIT}, {cfg.limit}
                s_cbranch_scc1 {R}
                s_mov_b32 s{sTAG}, 1
                """)
            else:
                a(f"s_branch {S}")
            a.label(GOT)
            a(f"""
            v_mov_b32 v56, 0
            v_mov_b32 v59, s{sTAG}
            ds_write_b32 v56, v59 offset:{F_TAG}
            """)
            a.label(H)
            a("v_mov_b32 v56, 0")
            a.label(R2)
            a(f"""
            ds_read_b64 v[96:97], v56 offset:{F_CQ}
            s_waitcnt lgkmcnt(0)
            v_readfirstlane_b32 s64, v96
            v_readfirstlane_b32 s65, v97
            s_add_u32 s64, s64, s65
            s_cmp_eq_u32 s64, 16
            """)
            if final:
                OKL = lab("HO")
                a(f"""
                s_cbranch_scc1 {OKL}
                s_add_u32 s{sIT}, s{sIT}, 1
                s_cmp_lt_u32 s{sIT}, {cfg.limit*20}
                s_cbranch_scc1 {R2}
                """)
                a.label(OKL)
            else:
                a(f"s_cbranch_scc0 {S}")
            a(f"""
            v_and_b32 v56, 1, v3
            v_lshlrev_b32 v59, 11, v56
            v_lshl_add_u32 v59, v4, 4, v59
            """)
            for w in range(8):
                a(f"ds_read_b128 v[{64+4*w}:{67+4*w}], v59 offset:{LQP + w*256}")
            tag_bytes()
            a(f"""
            v_mov_b32 v59, s{sQPUB}
            v_mov_b32 v96, s{sGPUB}
            v_cmp_ne_u32 vcc, 0, v56
            s_nop 1
            v_cndmask_b32 v59, v59, v96, vcc
            v_lshl_add_u32 v59, v4, 4, v59
            s_waitcnt lgkmcnt(0)
            """)
            tree8(a, 64, 4, 4)
            for k in range(4):
                a(f"v_bfi_b32 v{64+k}, s{sMSK}, v{64+k}, v{TB+k}")
            a("s_mov_b64 exec, 0xffffffff")
            a.vmem(f"buffer_store_dwordx4 v[64:67], v59, s[{sWS}:{sWS+3}], 0 offen sc1", "pub", optional=True)
            a(f"""
            s_mov_b64 exec, -1
            s_mov_b32 s{sPUB}, 1
            """)
            a.label(S)
        def q_poll_issue():
            a("v_lshlrev_b32 v10, 4, v1")
            a.vmem(f"buffer_load_dwordx4 v[32:35], v10, s[{sWS}:{sWS+3}], s{sQPL} offen sc1", "qp")
            a.vmem(f"buffer_load_dwordx4 v[36:39], v10, s[{sWS}:{sWS+3}], s{sQPL} offen offset:1024 sc1", "qp")
            if heavy:
                a(f"""
                v_and_b32 v11, s{sHPM}, v1
                v_lshlrev_b32 v11, 8, v11
                v_bfe_u32 v56, v1, 2, 1
                v_lshl_add_u32 v11, v56, 10, v11
                v_lshl_add_u32 v11, v3, 4, v11
                """)
                a.vmem(f"buffer_load_dwordx4 v[40:43], v11, s[{sWS}:{sWS+3}], s{sHPL} offen sc1", "qp")
        def q_poll_check():
            regs = [32, 36] + ([40] if heavy else [])
            lds_spin(F_TAG, "lg", 0, sTAG, 56, 59)
            tag_bytes()
            a.wait_for("qp")
            L, D = lab("QL"), lab("QD")
            a(f"s_mov_b32 s{sIT}, 0")
            a.label(L)
            xor_check(regs, 56)
            a(f"""
            v_cmp_ne_u32 vcc, 0, v56
            s_mov_b64 exec, -1
            s_cbranch_vccz {D}
            s_add_u32 s{sIT}, s{sIT}, 1
            s_cmp_lt_u32 s{sIT}, {cfg.limit}
            s_cbranch_scc0 {D}
            s_sleep {cfg.sleep}
            s_mov_b64 exec, vcc
            buffer_load_dwordx4 v[32:35], v10, s[{sWS}:{sWS+3}], s{sQPL} offen sc1
            buffer_load_dwordx4 v[36:39], v10, s[{sWS}:{sWS+3}], s{sQPL} offen offset:1024 sc1
            """)
            if heavy:
                a(f"buffer_load_dwordx4 v[40:43], v11, s[{sWS}:{sWS+3}], s{sHPL} offen sc1")
            a(f"""
            s_waitcnt vmcnt(0)
            s_branch {L}
            """)
            a.label(D)
            pk_add(a, 32, 32, 36)
            pk_add(a, 34, 34, 38)
            for k in range(4):
                a(f"v_mov_b32 v{36+k}, v{32+k}")
            a("s_nop 1")
            for k in range(4):
                a(f"v_permlane32_swap_b32 v{32+k}, v{36+k}")
            a(f"""
            v_add_f32 v32, v32, v36
            v_add_f32 v33, v33, v37
            v_add_f32 v34, v34, v38
            v_add_f32 v35, v35, v39
            v_cvt_pk_bf16_f32 v32, v32, v33
            v_cvt_pk_bf16_f32 v33, v34, v35
            v_and_b32 v56, 31, v1
            v_lshlrev_b32 v56, 3, v56
            s_mul_i32 s64, s3, {QS}
            v_add_u32 v56, s64, v56
            ds_write_b64 v56, v[32:33] offset:{LQ}
            """)
            lds_count(F_CQ2, 56, 59)
            prof_at(2)
            if heavy:
                a("s_nop 1")
                for k in range(4):
                    dpp(a, "v_add_f32", 40 + k, 40 + k, 40 + k, "quad_perm:[1,0,3,2]")
                a("s_nop 1")
                for k in range(4):
                    dpp(a, "v_add_f32", 40 + k, 40 + k, 40 + k, "quad_perm:[2,3,0,1]")
                for k in range(4):
                    a(f"v_mul_f32 v{40+k}, s{sHF}, v{40+k}")
                a(f"""
                v_and_b32 v56, 4, v1
                v_cmp_ne_u32 vcc, 0, v56
                """)
                for k in range(4):
                    a(f"v_mov_b32_dpp v{44+k}, v{40+k} row_half_mirror row_mask:0xf bank_mask:0xf")
                for k in range(4):
                    a(f"v_cndmask_b32 v{32+k}, v{40+k}, v{44+k}, vcc")
                for k in range(4):
                    a(f"v_cndmask_b32 v{44+k}, v{44+k}, v{40+k}, vcc")
                a(f"""
                v_cvt_pk_bf16_f32 v32, v32, v33
                v_cvt_pk_bf16_f32 v33, v34, v35
                v_cvt_pk_bf16_f32 v44, v44, v45
                v_cvt_pk_bf16_f32 v45, v46, v47
                v_lshlrev_b32 v36, 16, v32
                v_and_b32 v37, 0xffff0000, v32
                v_lshlrev_b32 v38, 16, v33
                v_and_b32 v39, 0xffff0000, v33
                """)
                for k in range(4):
                    a(f"v_mul_f32 v{40+k}, {f32(-LOG2E)}, v{36+k}")
                for k in range(4):
                    a(f"v_exp_f32 v{40+k}, v{40+k}")
                a("s_nop 0")
                for k in range(4):
                    a(f"v_add_f32 v{40+k}, 1.0, v{40+k}")
                for k in range(4):
                    a(f"v_rcp_f32 v{40+k}, v{40+k}")
                a("s_nop 0")
                for k in range(4):
                    a(f"v_mul_f32 v{36+k}, v{36+k}, v{40+k}")
                a(f"""
                v_cvt_pk_bf16_f32 v32, v36, v37
                v_cvt_pk_bf16_f32 v33, v38, v39
                v_lshlrev_b32 v36, 16, v32
                v_and_b32 v37, 0xffff0000, v32
                v_lshlrev_b32 v38, 16, v33
                v_and_b32 v39, 0xffff0000, v33
                v_lshlrev_b32 v40, 16, v44
                v_and_b32 v41, 0xffff0000, v44
                v_lshlrev_b32 v42, 16, v45
                v_and_b32 v43, 0xffff0000, v45
                """)
                for k in range(4):
                    a(f"v_mul_f32 v{36+k}, v{36+k}, v{40+k}")
                a(f"""
                v_cvt_pk_bf16_f32 v{HR}, v36, v37
                v_cvt_pk_bf16_f32 v{HR+1}, v38, v39
                """)
        PRE = 100
        def pre_issue():
            L = lab("PI")
            a(f"""
            s_cmp_lg_u32 s3, 0
            s_cbranch_scc1 {L}
            v_lshlrev_b32 v56, 5, v1
            """)
            for k, sr in enumerate((sX, sWR, sGW)):
                a.vmem(f"buffer_load_dwordx4 v[{PRE+8*k}:{PRE+8*k+3}], v56, s[{sr}:{sr+3}], 0 offen", "pre", optional=True)
                a.vmem(f"buffer_load_dwordx4 v[{PRE+8*k+4}:{PRE+8*k+7}], v56, s[{sr}:{sr+3}], 0 offen offset:16", "pre", optional=True)
            a.label(L)
        def prelude():
            L = lab("PC")
            X, W, Gw = PRE, PRE + 8, PRE + 16
            a(f"""
            s_cmp_lg_u32 s3, 0
            s_cbranch_scc1 {L}
            """)
            a.wait_for("pre")
            a(f"""
            v_mov_b32 v64, 0
            v_mov_b32 v65, 0
            """)
            for d in range(8):
                a(f"v_dot2c_f32_bf16 v64, v{X+d}, v{W+d}")
            for d in range(8):
                a(f"""
                v_lshlrev_b32 v66, 16, v{X+d}
                v_and_b32 v67, 0xffff0000, v{X+d}
                v_lshlrev_b32 v68, 16, v{Gw+d}
                v_and_b32 v69, 0xffff0000, v{Gw+d}
                v_mul_f32 v66, v66, v68
                v_mul_f32 v67, v67, v69
                v_cvt_pk_bf16_f32 v66, v66, v67
                v_lshlrev_b32 v67, 16, v66
                v_and_b32 v66, 0xffff0000, v66
                v_add_f32 v65, v65, v66
                v_add_f32 v65, v65, v67
                """)
            row_allreduce(a, [64, 65], "v_add_f32")
            cross_rows(a, [64, 65], 66, "v_add_f32")
            a(f"""
            v_cvt_pk_bf16_f32 v64, v64, v65
            v_and_b32 v65, 0xffff0000, v64
            v_lshlrev_b32 v64, 16, v64
            v_mul_f32 v64, {f32(-LOG2E)}, v64
            v_mul_f32 v65, {f32(-LOG2E)}, v65
            v_exp_f32 v64, v64
            v_exp_f32 v65, v65
            s_nop 0
            v_add_f32 v64, 1.0, v64
            v_add_f32 v65, 1.0, v65
            v_rcp_f32 v64, v64
            v_rcp_f32 v65, v65
            s_nop 0
            v_cvt_pk_bf16_f32 v64, v64, v65
            v_and_b32 v68, 0xffff0000, v64     ; g
            v_lshlrev_b32 v70, 16, v64         ; sr
            v_sub_f32 v69, 1.0, v68
            v_cvt_pk_bf16_f32 v69, v69, v69
            v_lshlrev_b32 v69, 16, v69         ; 1-g
            v_mov_b32 v71, 1
            v_mov_b32 v56, 0
            ds_write_b128 v56, v[68:71] offset:{LPRE}
            """)
            a.label(L)

        hk = [int(x) for x in cfg.hooks.split(",")]
        khooks = {}
        khooks.setdefault(cfg.qpoll, []).append(q_poll_issue)
        khooks.setdefault(cfg.qpoll + cfg.qchk, []).append(q_poll_check)
        if not heavy:
            khooks.setdefault(10, []).append(pre_issue)
            khooks.setdefault(14, []).append(prelude)

        stream.extend([(ld_xg, ())] + [(ld_g, (i,)) for i in range(4)])
        if heavy:
            stream.append((ld_g2, ()))
        stream.extend([(ld_k, (n,)) for n in range(32)])
        stream.extend([(ld_v, (G, i)) for G in range(2) for i in range(8)])
        assert cfg.burst <= 4
        slot(cfg.burst + 1, paced=False)
        a(f"""
        s_waitcnt lgkmcnt(0)
        s_barrier
        """)
        a.wait_for("wq")
        gemv_rows(a, 4, 16, 8, 48, 56, 59, slot)
        partial64(48, LQP, 56)
        lds_count(F_CQ, 56, 59)
        prof_at(1)
        fill("g", 10 if heavy else 5)
        a.wait_for("g")
        gemv_rows(a, 4, GR, XG, 48, 56, 59, slot)
        if heavy:
            for r0 in (4, 6):
                L = lab("GS")
                a(f"""
                s_cmp_lg_u32 s{sISQ}, 0
                s_cbranch_scc1 {L}
                """)
                gemv_rows(a, r0 + 2, GR, XG, 48, 56, 59, None, first=r0)
                a.label(L)
                slot()
        partial64(48, LGP, 56)
        lds_count(F_CG, 56, 59)
        prof_at(7)
        nxt = next(args[0] for fn, args in stream if fn is ld_k)
        for i, n in enumerate(hk):
            assert nxt + n < cfg.qpoll
            khooks[nxt + n] = [(lambda f=(i == len(hk) - 1): w0_hook(f))] + khooks.get(nxt + n, [])
        vstate["on"] = True
        while a.count("v0") < PH + 1:
            slot()
        a(f"""
        v_and_b32 v10, 7, v1
        v_mul_u32_u24 v10, {QS}, v10
        v_bfe_u32 v11, v1, 3, 1
        v_lshl_add_u32 v10, v11, 4, v10
        v_lshl_add_u32 v10, v3, 5, v10
        v_mov_b32 v61, 0xffff
        v_lshlrev_b32 v11, 4, v11
        v_lshlrev_b32 v61, v11, v61          ; P mask
        v_lshlrev_b32 v2, 13, v3
        v_lshl_add_u32 v2, v4, 4, v2
        """)
        lds_spin(F_CQ2, "ge", 8, 64, 56, 59)
        prof_at(3)
        a(f"""
        ds_read_b128 v[{QR}:{QR+3}], v10 offset:{LQ}
        ds_read_b128 v[{QR+4}:{QR+7}], v10 offset:{LQ+128}
        s_waitcnt lgkmcnt(0)
        """)
        def fixup(t):
            for ip in range(2):
                T = 2 * t + ip
                D = DR + (T & 3) * 4
                dpp(a, "v_add_f32", SR + T, D + 1, D, "row_ror:8", bank="0x3")
                dpp(a, "v_add_f32", SR + T, D + 2, D + 3, "row_ror:8", bank="0xc")
        for t in range(8):
            a.wait_for(f"k{t}")
            for hf in range(2):
                for ip in range(2):
                    T = 2 * t + ip
                    D = DR + (T & 3) * 4
                    r = KR + (4 * t + 2 * ip + hf) * 4
                    c = "0" if hf == 0 else f"v[{D}:{D+3}]"
                    a(f"v_mfma_f32_16x16x32_bf16 v[{D}:{D+3}], v[{r}:{r+3}], v[{QR+4*hf}:{QR+4*hf+3}], {c}")
            if t == 1:
                a("s_nop 3")
            if t > 0:
                fixup(t - 1)
            if t in (1, 3, 5):
                slot()
        slot()
        a("s_nop 7")
        fixup(7)
        st["qk"] = True
        stream.extend([(ld_v, (G, i)) for G in (2, 3) for i in range(8)])
        prof_at(4)
        for r in range(32):
            a(f"v_mov_b32 v{OR_+r}, 0")
        slot()
        a(f"v_max3_f32 v8, v{SR}, v{SR+1}, v{SR+2}")
        for r in range(3, 15, 2):
            a(f"v_max3_f32 v8, v8, v{SR+r}, v{SR+r+1}")
        a(f"v_max_f32 v8, v8, v{SR+15}")
        row_allreduce(a, [8], "v_max_f32", steps=(8,))
        cross_rows(a, [8], 10, "v_max_f32")
        a(f"""
        v_mul_f32 v8, {f32(CSC)}, v8
        v_mov_b32 v11, {f32(CSC)}
        v_mov_b32 v9, 0
        v_and_b32 v10, 7, v1
        v_lshlrev_b32 v10, 5, v10
        s_lshl_b32 s64, s3, 2
        v_add_u32 v60, s64, v10           ; head*32 + w*4
        ds_write_b32 v60, v8 offset:{LMX}
        """)
        for r in range(16):
            a(f"v_fma_f32 v{SR+r}, v{SR+r}, v11, -v8")
        lds_count(F_CM, 56, 59)
        slot()
        for r in range(16):
            a(f"v_exp_f32 v{SR+r}, v{SR+r}")
        a("s_nop 0")
        for r in range(16):
            a(f"v_cvt_pk_bf16_f32 v{PR+r}, v{SR+r}, v{SR+r}")
        slot()
        for r in range(16):
            a(f"v_and_b32 v{PR+r}, v61, v{PR+r}")
        for r in range(16):
            a(f"v_dot2c_f32_bf16 v9, s{sONE}, v{PR+r}")
        a("s_nop 1")
        row_allreduce(a, [9], "v_add_f32", steps=(8,))
        cross_rows(a, [9], 10, "v_add_f32")
        st["sm"] = True
        tl = ([(ld_wd, (i,)) for i in range(4)] if heavy else [])
        to = [(ld_wo, (i,)) for i in range(4)]
        stream.extend(to + tl if cfg.od else tl + to)
        tb = 0
        for G in range(4):
            vb = (VR0 + G * 32) if G < 2 else (VR1 + (G - 2) * 32)
            fill(f"v{G}", 8)
            a.wait_for(f"v{G}")
            if G == 3:
                prof_at(5)
                slot(cfg.extra, paced=False)
                a(f"""
                v_mov_b32 v56, 0
                v_and_b32 v10, 7, v1
                v_lshlrev_b32 v10, 5, v10
                ds_read_b32 v59, v56 offset:{F_CM}
                ds_read_b128 v[100:103], v10 offset:{LMX}
                ds_read_b128 v[104:107], v10 offset:{LMX+16}
                """)
            for j in range(4):
                T = TR + tb * 8
                tb ^= 1
                for p in range(4):
                    ra = vb + (2 * p) * 4 + j
                    rb = vb + (2 * p + 1) * 4 + j
                    a(f"v_perm_b32 v{T+p}, v{rb}, v{ra}, s{sPA}")
                    a(f"v_perm_b32 v{T+4+p}, v{rb}, v{ra}, s{sPB}")
                a("s_nop 1")
                for h in range(2):
                    e = 2 * j + h
                    a(f"v_mfma_f32_16x16x32_bf16 v[{OR_+4*e}:{OR_+4*e+3}], v[{T+4*h}:{T+4*h+3}], v[{PR+4*G}:{PR+4*G+3}], v[{OR_+4*e}:{OR_+4*e+3}]")
                if j in (1, 3) and G < 3:
                    slot()
            st["pv"] = G
        MS, MD = lab("MS"), lab("MD")
        a(f"""
        s_mov_b32 s{sIT}, 0
        """)
        a.label(MS)
        a(f"""
        s_waitcnt lgkmcnt(0)
        v_readfirstlane_b32 s64, v59
        s_cmp_ge_u32 s64, 8
        s_cbranch_scc1 {MD}
        s_add_u32 s{sIT}, s{sIT}, 1
        s_cmp_lt_u32 s{sIT}, {cfg.limit*20}
        s_cbranch_scc0 {MD}
        ds_read_b32 v59, v56 offset:{F_CM}
        ds_read_b128 v[100:103], v10 offset:{LMX}
        ds_read_b128 v[104:107], v10 offset:{LMX+16}
        s_branch {MS}
        """)
        a.label(MD)
        a(f"""
        v_max3_f32 v10, v100, v101, v102
        v_max3_f32 v10, v10, v103, v104
        v_max3_f32 v10, v10, v105, v106
        v_max_f32 v10, v10, v107            ; M (wg)
        v_sub_f32 v108, v8, v10
        v_exp_f32 v108, v108
        v_and_b32 v11, 7, v1
        v_mul_u32_u24 v11, {HS}, v11
        v_bfe_u32 v109, v1, 3, 1
        v_lshl_add_u32 v11, v109, 4, v11
        v_lshl_add_u32 v11, v3, 7, v11
        s_mul_i32 s64, s3, {WSZ}
        v_add_u32 v11, s64, v11
        v_mul_f32 v9, v9, v108
        ds_write_b32 v60, v9 offset:{LL}
        """)
        F = TR
        for r in range(4):
            for e in range(4):
                dpp(a, "v_add_f32", F + 4 * r + e, OR_ + 4 * e + r, OR_ + 4 * e + r, "row_ror:8", bank="0x3")
                dpp(a, "v_add_f32", F + 4 * r + e, OR_ + 4 * (4 + e) + r, OR_ + 4 * (4 + e) + r, "row_ror:8", bank="0xc")
            for k in (0, 2):
                a(f"v_pk_mul_f32 v[{F+4*r+k}:{F+4*r+k+1}], v[{F+4*r+k}:{F+4*r+k+1}], v[108:109] op_sel_hi:[1,0]")
            a(f"ds_write_b128 v11, v[{F+4*r}:{F+4*r+3}] offset:{LO + r*32}")
        lds_count(F_CO, 56, 59, rtn=64)
        NL = lab("NL")
        a(f"""
        s_cmp_eq_u32 s64, 0
        s_cselect_b32 s{sPOL}, 1, 0
        s_cmp_lg_u32 s64, 7
        s_cbranch_scc1 {NL}
        v_lshrrev_b32 v11, 5, v1
        v_mul_u32_u24 v11, {HS}, v11
        v_and_b32 v56, 31, v1
        v_lshl_add_u32 v11, v56, 4, v11
        v_and_b32 v56, 7, v1
        v_lshlrev_b32 v56, 5, v56
        """)
        def rd(k):
            for w in range(8):
                r = 128 + (k * 8 + w) * 4
                a(f"ds_read_b128 v[{r}:{r+3}], v11 offset:{LO + w*WSZ + 2*k*HS}")
        rd(0)
        a(f"""
        ds_read_b128 v[100:103], v56 offset:{LL}
        ds_read_b128 v[104:107], v56 offset:{LL+16}
        v_lshrrev_b32 v59, 2, v1
        v_lshlrev_b32 v59, 12, v59
        v_and_b32 v56, 3, v1
        v_lshl_add_u32 v59, v56, 4, v59
        s_lshl_b32 s64, s{sG}, 18
        s_lshl_b32 s65, s{sJ}, 6
        s_add_u32 s64, s64, s65
        s_add_u32 s64, s64, {AO}
        s_lshl_b32 s66, s{sG}, 13
        s_lshl_b32 s65, s{sJ}, 4
        s_add_u32 s66, s66, s65
        s_add_u32 s66, s66, {AML}
        v_lshlrev_b32 v56, 10, v1
        """)
        for k in range(4):
            if k == 0:
                a("s_waitcnt lgkmcnt(2)")
            else:
                a("s_waitcnt lgkmcnt(0)")
            if k < 3:
                rd(k + 1)
            b = 128 + k * 32
            tree8(a, b, 4, 4)
            for q in range(4):
                a(f"v_bfi_b32 v{b+q}, s{sMSK}, v{b+q}, v{TB+q}")
            a.vmem(f"buffer_store_dwordx4 v[{b}:{b+3}], v59, s[{sWS}:{sWS+3}], s64 offen sc1", "ost", optional=True)
            if k < 3:
                a("s_add_u32 s64, s64, 65536")
            if k == 0:
                a(f"""
                s_waitcnt lgkmcnt(8)
                v_pk_add_f32 v[100:101], v[100:101], v[102:103]
                v_pk_add_f32 v[104:105], v[104:105], v[106:107]
                v_pk_add_f32 v[100:101], v[100:101], v[104:105]
                v_add_f32 v101, v100, v101
                v_mov_b32 v100, v10
                v_mov_b32 v102, s{sTAG}
                v_mov_b32 v103, s{sTAG}
                s_mov_b64 exec, 0xff
                """)
                a.vmem(f"buffer_store_dwordx4 v[100:103], v56, s[{sWS}:{sWS+3}], s66 offen sc1", "ost", optional=True)
                a("s_mov_b64 exec, -1")
        dbg_at(2)
        a.label(NL)
        prof_at(6)
        def h1_addr():
            a(f"""
            v_lshlrev_b32 v110, 4, v1
            v_lshrrev_b32 v111, 2, v1
            v_lshlrev_b32 v111, 4, v111
            s_lshl_b32 s66, s2, 12
            s_add_u32 s66, s66, {AO}
            s_lshr_b32 s67, s2, 3
            s_lshl_b32 s67, s67, 10
            s_add_u32 s67, s67, {AML}
            """)
        def h1_issue(opt):
            for k in range(4):
                s = f"buffer_load_dwordx4 v[{128+4*k}:{131+4*k}], v110, s[{sWS}:{sWS+3}], s66 offen offset:{1024*k} sc1"
                a.vmem(s, "h1", optional=True) if opt else a(s)
                s = f"buffer_load_dwordx3 v[{144+4*k}:{146+4*k}], v111, s[{sWS}:{sWS+3}], s67 offen offset:{256*k} sc1"
                a.vmem(s, "h1", optional=True) if opt else a(s)
        if heavy and not cfg.od:
            fill("wd", 4)
            a.wait_for("wd")
            slot(8, paced=False)
        else:
            while stream:
                slot()
        h1_addr()
        L = lab("NP")
        a(f"""
        s_cmp_eq_u32 s{sPOL}, 0
        s_cbranch_scc1 {L}
        """)
        h1_issue(True)
        a.label(L)
        if not heavy:
            a(f"""
            v_and_b32 v112, 31, v1
            v_lshlrev_b32 v112, 1, v112
            s_lshl_b32 s68, s{sU}, 6
            """)
            a.vmem(f"buffer_load_ushort v113, v112, s[{sX}:{sX+3}], s68 offen", "xf")
        def d_stage():
            gemv_rows(a, 4, WDR, HR, 120, 56, 59)
            reduce8(a, 120)
            a(f"""
            v_and_b32 v56, 1, v3
            v_lshlrev_b32 v56, 1, v56
            v_lshrrev_b32 v59, 1, v3
            v_or_b32 v56, v56, v59                ; sigma(g4)
            v_lshl_add_u32 v56, v4, 3, v56
            v_lshlrev_b32 v56, 2, v56
            s_lshl_b32 s64, s3, 9
            v_add_u32 v56, s64, v56
            v_add_u32 v56, {LDP}, v56
            ds_write2_b32 v56, v120, v124 offset0:0 offset1:4
            """)
            lds_count(F_CD, 56, 59, rtn=64)
            L = lab("ND")
            a(f"""
            s_cmp_lg_u32 s64, 7
            s_cbranch_scc1 {L}
            v_and_b32 v56, 31, v1
            v_lshlrev_b32 v56, 4, v56
            """)
            for w in range(8):
                a(f"ds_read_b128 v[{64+4*w}:{67+4*w}], v56 offset:{LDP + w*512}")
            a(f"""
            v_bfe_u32 v56, v1, 3, 2
            v_mul_u32_u24 v56, {FINB}, v56
            v_and_b32 v59, 7, v1
            v_lshl_add_u32 v56, v59, 4, v56
            s_and_b32 s64, s{sU}, 7
            s_mul_i32 s64, s64, {4*FINB}
            s_lshr_b32 s65, s{sU}, 3
            s_lshl_b32 s65, s65, 7
            s_add_u32 s64, s64, s65
            s_add_u32 s64, s64, {OP + 256*128}
            s_waitcnt lgkmcnt(0)
            """)
            tree8(a, 64, 4, 4)
            for k in range(4):
                a(f"v_bfi_b32 v{64+k}, s{sMSK}, v{64+k}, v{TB+k}")
            a("s_mov_b64 exec, 0xffffffff")
            a.vmem(f"buffer_store_dwordx4 v[64:67], v56, s[{sWS}:{sWS+3}], s64 offen sc1", "yst", optional=True)
            a("s_mov_b64 exec, -1")
            a.label(L)
            prof_at(11)
        if heavy:
            if cfg.od:
                a.wait_for("wd")
            d_stage()
        NP, PL, PD = lab("NP"), lab("PL"), lab("PD")
        a(f"""
        s_cmp_eq_u32 s{sPOL}, 0
        s_cbranch_scc1 {NP}
        s_mov_b32 s{sIT}, 0
        """)
        a.label(PL)
        a("s_waitcnt vmcnt(0)")
        xor_check([128, 132, 136, 140], 56)
        for k in range(4):
            a(f"v_xor_b32 v{147+4*k}, s{sTAG}, v{146+4*k}")
        a(f"""
        v_or3_b32 v56, v56, v147, v151
        v_or3_b32 v56, v56, v155, v159
        v_cmp_ne_u32 vcc, 0, v56
        s_mov_b64 exec, -1
        s_cbranch_vccz {PD}
        s_add_u32 s{sIT}, s{sIT}, 1
        s_cmp_lt_u32 s{sIT}, {cfg.limit}
        s_cbranch_scc0 {PD}
        s_sleep {cfg.sleep}
        s_mov_b64 exec, vcc
        """)
        h1_issue(False)
        a(f"s_branch {PL}")
        a.label(PD)
        prof_at(14)
        a(f"""
        v_max3_f32 v100, v144, v148, v152
        v_max_f32 v100, v100, v156
        """)
        row_allreduce(a, [100], "v_max_f32", steps=(4, 8))
        cross_rows(a, [100], 56, "v_max_f32")
        for k in range(4):
            a(f"v_sub_f32 v{144+4*k}, v{144+4*k}, v100")
        for k in range(4):
            a(f"v_exp_f32 v{144+4*k}, v{144+4*k}")
        a(f"""
        s_nop 0
        v_mul_f32 v104, v144, v145
        """)
        for d in range(4):
            a(f"v_mul_f32 v{100+d}, v144, v{128+d}")
        for k in range(1, 4):
            a(f"v_fmac_f32 v104, v{144+4*k}, v{145+4*k}")
            for d in range(4):
                a(f"v_fmac_f32 v{100+d}, v{144+4*k}, v{128+4*k+d}")
        row_allreduce(a, [100, 101, 102, 103, 104], "v_add_f32", steps=(4, 8))
        cross_rows(a, [100, 101, 102, 103, 104], 105, "v_add_f32")
        a(f"""
        v_rcp_f32 v104, v104
        v_lshlrev_b32 v56, 4, v1
        v_mov_b32 v106, 1
        v_mov_b32 v107, 1
        v_mul_f32 v100, v100, v104
        v_mul_f32 v101, v101, v104
        v_mul_f32 v102, v102, v104
        v_mul_f32 v103, v103, v104
        v_cvt_pk_bf16_f32 v104, v100, v101
        v_cvt_pk_bf16_f32 v105, v102, v103
        s_mov_b64 exec, 0xf
        ds_write_b128 v56, v[104:107] offset:{LOV}
        s_mov_b64 exec, -1
        """)
        a.label(NP)
        OL, OD = lab("OL"), lab("OD")
        a(f"""
        v_lshlrev_b32 v56, 4, v3
        v_lshrrev_b32 v114, 2, v4
        v_mul_u32_u24 v114, {FINB}, v114
        v_and_b32 v59, 3, v4
        v_lshl_add_u32 v114, v59, 5, v114
        v_lshrrev_b32 v59, 5, v1
        v_lshl_add_u32 v114, v59, 4, v114
        s_mul_i32 s64, s3, {4*FINB}
        s_lshl_b32 s65, s2, 7
        s_add_u32 s64, s64, s65
        s_add_u32 s64, s64, {OP}
        s_mov_b32 s{sMC}, 0xffff
        s_mov_b32 s{sMC+1}, 0xffff
        s_mov_b32 s{sIT}, 0
        """)
        a.label(OL)
        a(f"""
        ds_read_b128 v[104:107], v56 offset:{LOV}
        s_waitcnt lgkmcnt(0)
        v_cmp_ne_u32 vcc, 1, v106
        s_cbranch_vccz {OD}
        s_sleep 1
        s_add_u32 s{sIT}, s{sIT}, 1
        s_cmp_lt_u32 s{sIT}, {cfg.limit*20}
        s_cbranch_scc1 {OL}
        """)
        a.label(OD)
        prof_at(8)
        a.wait_for("wo")
        gemv_rows(a, 4, WOR, 104, 120, 56, 59)
        a("s_nop 1")
        for k in range(4):
            a(f"v_permlane32_swap_b32 v{120+k}, v{124+k}")
        for k in range(4):
            a(f"v_add_f32 v{120+k}, v{120+k}, v{124+k}")
        for k in range(4):
            a(f"v_mov_b32 v{124+k}, v{120+k}")
        a("s_nop 1")
        for k in range(4):
            a(f"v_permlane16_swap_b32 v{120+k}, v{124+k}")
        for k in range(4):
            a(f"v_add_f32 v{120+k}, v{120+k}, v{124+k}")
        for k in range(4):
            a(f"v_bfi_b32 v{120+k}, s{sMSK}, v{120+k}, v{TB+k}")
        a(f"""
        s_mov_b64 exec, s[{sMC}:{sMC+1}]
        buffer_store_dwordx4 v[120:123], v114, s[{sWS}:{sWS+3}], s64 offen sc1
        s_mov_b64 exec, -1
        """)
        prof_at(9)
        if heavy:
            a("s_branch L_FIN_END")
            return
        FL, FD, F1, F2, F3, F4 = [lab("F") for _ in range(6)]
        a(f"""
        s_mul_i32 s66, s{sU}, {FINB}
        s_add_u32 s66, s66, {OP}
        s_lshl_b32 s67, s3, 9
        s_add_u32 s67, s67, s66
        s_add_u32 s67, s67, 32768
        s_lshl_b32 s65, s3, 12
        s_add_u32 s66, s66, s65
        s_mov_b64 s[{sMA}:{sMA+1}], -1
        s_cmp_lt_u32 s3, 7
        s_cselect_b32 s{sMB}, -1, 0
        s_mov_b32 s{sMB+1}, 0
        v_mov_b32 v144, 0
        v_mov_b32 v145, 0
        v_mov_b32 v146, 0
        v_mov_b32 v147, 0
        s_mov_b32 s{sIT}, 0
        """)
        a.label(FL)
        a(f"""
        s_cmp_eq_u64 s[{sMA}:{sMA+1}], 0
        s_cbranch_scc1 {F1}
        s_mov_b64 exec, s[{sMA}:{sMA+1}]
        """)
        for k in range(4):
            a(f"buffer_load_dwordx4 v[{128+4*k}:{131+4*k}], v110, s[{sWS}:{sWS+3}], s66 offen offset:{1024*k} sc1")
        a.label(F1)
        a(f"""
        s_cmp_eq_u64 s[{sMB}:{sMB+1}], 0
        s_cbranch_scc1 {F2}
        s_mov_b64 exec, s[{sMB}:{sMB+1}]
        buffer_load_dwordx4 v[144:147], v110, s[{sWS}:{sWS+3}], s67 offen sc1
        """)
        a.label(F2)
        a(f"""
        s_waitcnt vmcnt(0)
        s_mov_b64 exec, s[{sMA}:{sMA+1}]
        """)
        xor_check([128, 132, 136, 140], 56)
        a(f"""
        v_cmp_ne_u32 s[{sMA}:{sMA+1}], 0, v56
        s_mov_b64 exec, s[{sMB}:{sMB+1}]
        """)
        xor_check([144], 56)
        a(f"""
        v_cmp_ne_u32 s[{sMB}:{sMB+1}], 0, v56
        s_mov_b64 exec, -1
        s_nop 3
        s_or_b64 vcc, s[{sMA}:{sMA+1}], s[{sMB}:{sMB+1}]
        s_cmp_eq_u64 vcc, 0
        s_cbranch_scc1 {FD}
        s_add_u32 s{sIT}, s{sIT}, 1
        s_cmp_lt_u32 s{sIT}, {cfg.limit}
        s_cbranch_scc0 {FD}
        s_sleep {cfg.sleep}
        s_branch {FL}
        """)
        a.label(FD)
        prof_at(12)
        pk_add(a, 128, 128, 132); pk_add(a, 130, 130, 134)
        pk_add(a, 136, 136, 140); pk_add(a, 138, 138, 142)
        pk_add(a, 140, 128, 136); pk_add(a, 142, 130, 138)
        reduce8(a, 140)
        row_allreduce(a, [140, 144], "v_add_f32", steps=(8,))
        a(f"""
        v_mov_b32 v141, v144
        v_and_b32 v56, 1, v3
        v_lshlrev_b32 v56, 1, v56
        v_lshrrev_b32 v59, 1, v3
        v_or_b32 v56, v56, v59                ; sigma(g4)
        v_and_b32 v59, 7, v1
        v_lshl_add_u32 v56, v59, 2, v56       ; column
        v_lshlrev_b32 v56, 3, v56
        s_lshl_b32 s64, s3, 8
        v_add_u32 v56, s64, v56
        ds_write_b64 v56, v[140:141] offset:{LF}
        """)
        lds_count(F_CF, 56, 59, rtn=64)
        a(f"""
        s_cmp_lg_u32 s64, 7
        s_cbranch_scc1 L_FIN_END
        v_lshlrev_b32 v56, 2, v112
        v_mov_b32 v59, 0
        s_mov_b32 s{sIT}, 0
        """)
        for w in range(8):
            a(f"ds_read_b64 v[{64+2*w}:{65+2*w}], v56 offset:{LF + w*256}")
        a.label(F3)
        a(f"""
        ds_read_b128 v[100:103], v59 offset:{LPRE}
        s_waitcnt lgkmcnt(0)
        v_cmp_ne_u32 vcc, 1, v103
        s_cbranch_vccz {F4}
        s_add_u32 s{sIT}, s{sIT}, 1
        s_cmp_lt_u32 s{sIT}, {cfg.limit*20}
        s_cbranch_scc1 {F3}
        """)
        a.label(F4)
        if cfg.dly:
            SPL = lab("DLY")
            a(f"""
            s_memrealtime s[70:71]
            s_waitcnt lgkmcnt(0)
            s_mov_b32 s65, s70
            """)
            a.label(SPL)
            a(f"""
            s_memrealtime s[70:71]
            s_waitcnt lgkmcnt(0)
            s_sub_u32 s70, s70, s65
            s_cmp_lt_u32 s70, {cfg.dly}
            s_cbranch_scc1 {SPL}
            """)
        if cfg.spin:
            SPL = lab("SPIN")
            a.label(SPL)
            a(f"""
            s_memrealtime s[70:71]
            s_waitcnt lgkmcnt(0)
            s_sub_u32 s70, s70, s{sTAG}
            s_cmp_lt_u32 s70, {cfg.spin}
            s_cbranch_scc1 {SPL}
            """)
        tree8(a, 64, 2, 2)
        a(f"""
        v_lshlrev_b32 v113, 16, v113        ; x
        v_cvt_pk_bf16_f32 v80, v64, v65
        v_and_b32 v81, 0xffff0000, v80      ; y
        v_lshlrev_b32 v80, 16, v80          ; a
        v_mul_f32 v81, v102, v81            ; y*sr
        v_mul_f32 v80, v100, v80            ; g*a
        v_cvt_pk_bf16_f32 v80, v80, v81
        v_and_b32 v81, 0xffff0000, v80
        v_lshlrev_b32 v80, 16, v80
        v_add_f32 v81, v81, v113            ; b
        v_cvt_pk_bf16_f32 v81, v81, v81
        v_lshlrev_b32 v81, 16, v81
        v_mul_f32 v81, v101, v81            ; (1-g)*b
        v_cvt_pk_bf16_f32 v81, v81, v81
        v_lshlrev_b32 v81, 16, v81
        v_add_f32 v64, v80, v81
        v_cvt_pk_bf16_f32 v64, v64, v64
        s_mov_b64 exec, 0xffffffff
        buffer_store_short v64, v112, s[{sOUT}:{sOUT+3}], s68 offen
        s_mov_b64 exec, -1
        """)
        dbg_at(1)

    body(True)
    a.label("L_LIGHT")
    body(False)
    a.label("L_FIN_END")
    if cfg.prof:
        prof_at(13)
        a(f"""
        s_lshl_b32 s64, s97, 9
        s_lshl_b32 s65, s3, 6
        s_add_u32 s64, s64, s65
        s_add_u32 s64, s64, {PROFB}
        v_lshlrev_b32 v56, 2, v1
        s_mov_b64 exec, 0xffff
        buffer_store_dword v0, v56, s[{sWS}:{sWS+3}], s64 offen
        """)
    a.label("L_END")
    a("s_endpgm")

    hdr = f"""; generated: single persistent kernel (q gemv + exchange, split-K attention, FFN, combine, final)
; @launch grid=(256,1,1) block=(512,1,1) lds={LDS_TOTAL}
.amdgcn_target "amdgcn-amd-amdhsa--gfx950"
.text
"""
    tail = f""".section .rodata,"a"
.p2align 6
.amdhsa_kernel {kname}
  .amdhsa_next_free_vgpr 256
  .amdhsa_next_free_sgpr 102
  .amdhsa_accum_offset 256
  .amdhsa_group_segment_fixed_size 0
  .amdhsa_kernarg_size 112
  .amdhsa_user_sgpr_count 2
  .amdhsa_user_sgpr_kernarg_segment_ptr 1
  .amdhsa_system_sgpr_workgroup_id_x 1
.end_amdhsa_kernel
"""
    return hdr + a.text() + tail

if __name__ == "__main__":
    cfg = Cfg()
    out = "v8.s"
    for arg in sys.argv[1:]:
        if "=" in arg:
            k, v = arg.split("=")
            if k in ("nt",):
                setattr(cfg, k, " nt" if v == "1" else "")
            elif k in ("hooks", "cks"):
                setattr(cfg, k, v)
            else:
                setattr(cfg, k, int(v))
        else:
            out = arg
    open(out, "w").write(build(cfg))
    print("wrote", out)
```
